```python
import torch

def _softmax(x, axis=-1):
    return torch.softmax(x, dim=axis)

def _gelu(x):
    return torch.nn.functional.gelu(x, approximate='tanh')

def _silu(x):
    return torch.nn.functional.silu(x)

def _sigmoid(x):
    return torch.sigmoid(x)

def _layernorm(x, axis=-1, eps=1e-05):
    m = x.mean(dim=axis, keepdim=True)
    v = x.var(dim=axis, keepdim=True, unbiased=False)
    return (x - m) / torch.sqrt(v + eps)

def _scatter_add(tgt, idx, src, axis=0):
    return tgt.clone().index_add_(axis, idx, src)

def _segment_sum(src, seg, n):
    out = torch.zeros((n,) + src.shape[1:], dtype=src.dtype)
    return out.index_add_(0, seg, src)

def _pad(x, pw):
    flat = tuple((v for pair in reversed(pw) for v in pair))
    return torch.nn.functional.pad(x, flat)
kernel_name = 'adaLN_cond__spectral_gfnet__mixer_token_mlp__prompt'

def setup_inputs():

    _w = lambda a: (lambda t: t.to(torch.bfloat16) if t.is_floating_point() else t)(torch.as_tensor(a))

    def _A_setup():
        B, S, D = (1, 2048, 576)
        Df = D // 2 + 1
        return {'x': _w((lambda *s: torch.randn(*s, dtype=torch.bfloat16) * 0.05)(B, S, D)), 'w_r': _w((lambda *s: torch.randn(*s, dtype=torch.bfloat16) * 1.6)(S, Df) * 0.02), 'w_i': _w((lambda *s: torch.randn(*s, dtype=torch.bfloat16) * 1.6)(S, Df) * 0.02)}
    _A_in = _A_setup()

    def _B_setup():
        B, S, D, F = (1, 2048, 576, 4608)
        return {'x': _w((lambda *s: torch.randn(*s, dtype=torch.bfloat16) * 0.05)(B, S, D)), 'w1': _w((lambda *s: torch.randn(*s, dtype=torch.bfloat16) * 0.8)(S, F) * S ** (-0.5)), 'b1': _w((lambda *s: torch.randn(*s, dtype=torch.bfloat16) * 12.8)(F) * 0.02), 'w2': _w((lambda *s: torch.randn(*s, dtype=torch.bfloat16) * 0.2)(F, S) * F ** (-0.5)), 'b2': _w((lambda *s: torch.randn(*s, dtype=torch.bfloat16) * 1.6)(S) * 0.02)}
    _B_in = _B_setup()
    return {'A_x': _A_in['x'], 'A_w_r': _A_in['w_r'], 'A_w_i': _A_in['w_i'], 'B_x': _B_in['x'], 'B_w1': _B_in['w1'], 'B_b1': _B_in['b1'], 'B_w2': _B_in['w2'], 'B_b2': _B_in['b2'], 'c': _w((lambda *s: torch.randn(*s, dtype=torch.bfloat16) * 0.1)(1, 576) * 8.0), 'w_mod': _w((lambda *s: torch.randn(*s, dtype=torch.bfloat16) * 0.1)(576, 6 * 576) * 576 ** (-0.5) * 8.0)}

def reference(A_x, A_w_r, A_w_i, B_x, B_w1, B_b1, B_w2, B_b2, c, w_mod):

    def _A_ref(x, w_r, w_i):
        B, S, D = x.shape
        X = (lambda x, axes=(-2, -1): torch.fft.rfft2(x.float(), dim=axes))(x, axes=(-2, -1))
        W = w_r + 1j * w_i
        X = X * W
        y = (lambda x, s, axes=(-2, -1): torch.fft.irfft2(x, s=s, dim=axes).to(torch.bfloat16))(X, (S, D), axes=(-2, -1))
        return y

    def _B_ref(x, w1, b1, w2, b2):
        B, S, D = x.shape
        h = _layernorm(x, axis=-1)
        u = torch.einsum('bsd,sf->bdf', h, w1) + b1
        u = _gelu(u)
        y = torch.einsum('bdf,fs->bds', u, w2) + b2
        return (lambda x, *d: x.permute(*d))(y, 0, 2, 1)
    x = A_x
    mod = (_silu(c) @ w_mod).reshape(c.shape[0], 6, 1, -1)
    sa, ca, ga, sb, cb, gb = (mod[:, 0].clone(), mod[:, 1].clone(), mod[:, 2].clone(), mod[:, 3].clone(), mod[:, 4].clone(), mod[:, 5].clone())
    h = _layernorm(x, axis=-1) * (1 + ca) + sa
    x = x + ga * _A_ref(h, A_w_r, A_w_i)
    h = _layernorm(x, axis=-1) * (1 + cb) + sb
    x = x + gb * _B_ref(h, B_w1, B_b1, B_w2, B_b2)
    return x
```

```python
import re
import struct

TRANS = ('v_exp_f32', 'v_log_f32', 'v_rcp_f32', 'v_rsq_f32', 'v_sqrt_f32', 'v_sin_f32', 'v_cos_f32',
         'v_rcp_iflag_f32')


def f32(x):
    return '0x%08x' % struct.unpack('<I', struct.pack('<f', x))[0]


_REG = re.compile(r'^(-|\|)?(?:abs\()?([vas])(?:\[(\d+):(\d+)\]|(\d+))\)?\|?$')


def regs_of(op):
    op = op.strip()
    if op in ('vcc',):
        return {('s', 'vcc_lo'), ('s', 'vcc_hi')}
    if op in ('vcc_lo', 'vcc_hi'):
        return {('s', op)}
    if op == 'exec':
        return {('s', 'exec_lo'), ('s', 'exec_hi')}
    if op == 'm0':
        return {('s', 'm0')}
    m = _REG.match(op)
    if not m:
        return set()
    kind = m.group(2)
    if m.group(3) is not None:
        return {(kind, i) for i in range(int(m.group(3)), int(m.group(4)) + 1)}
    return {(kind, int(m.group(5)))}


class Ins:
    __slots__ = ('text', 'op', 'ops', 'mods', 'w', 'r', 'kind', 'label', 'target', 'srcc', 'srcab', 'states',
                 'passes', 'dpp', 'sdata')

    def __init__(self, text):
        self.text = text
        self.label = None
        self.target = None
        self.w = set()
        self.r = set()
        self.srcc = set()
        self.srcab = set()
        self.sdata = set()
        self.states = 1
        self.passes = 0
        self.dpp = False
        t = text.split(';')[0].strip()
        if t.endswith(':'):
            self.kind = 'label'
            self.label = t[:-1]
            self.states = 0
            self.op = ''
            return
        if not t or t.startswith('.'):
            self.kind = 'dir'
            self.states = 0
            self.op = ''
            return
        parts = t.split(None, 1)
        self.op = op = parts[0]
        rest = parts[1] if len(parts) > 1 else ''
        ops, depth, cur = [], 0, ''
        for ch in rest:
            if ch == '[':
                depth += 1
            elif ch == ']':
                depth -= 1
            if ch == ',' and depth == 0:
                ops.append(cur.strip())
                cur = ''
            else:
                cur += ch
        if cur.strip():
            ops.append(cur.strip())
        mods = ''
        if ops:
            last = ops[-1].split(None, 1)
            ops[-1] = last[0]
            if len(last) > 1:
                mods = last[1]
        self.ops = ops
        self.mods = mods
        R = [regs_of(o) for o in ops]
        allr = lambda idxs: set().union(*[R[i] for i in idxs]) if idxs else set()
        n = len(ops)
        if op.startswith('v_mfma'):
            self.kind = 'mfma'
            self.passes = 8 if '32x32x16' in op else 4
            self.w = R[0]
            self.srcab = R[1] | R[2]
            self.srcc = R[3]
            self.r = self.srcab | self.srcc
        elif op.startswith('v_cmp'):
            self.kind = 'valu'
            self.w = R[0]
            if op.startswith('v_cmpx'):
                self.w = self.w | regs_of('exec')
            self.r = allr(range(1, n))
        elif (op.startswith('v_permlane') and 'swap' in op) or op.startswith('v_swap'):
            self.kind = 'valu'
            self.w = R[0] | R[1]
            self.r = R[0] | R[1]
        elif op.startswith('v_readfirstlane') or op.startswith('v_readlane'):
            self.kind = 'valu'
            self.w = R[0]
            self.r = allr(range(1, n))
        elif op.startswith(('v_add_co', 'v_sub_co', 'v_addc_co', 'v_subb_co', 'v_subrev_co', 'v_mad_u64')):
            self.kind = 'valu'
            self.w = R[0] | R[1]
            self.r = allr(range(2, n))
        elif op.startswith('v_'):
            self.kind = 'valu'
            self.w = R[0]
            self.r = allr(range(1, n))
            if op.startswith(('v_fmac', 'v_pk_fmac', 'v_dot2c')):
                self.r |= R[0]
            if '_dpp' in op or 'quad_perm' in mods or 'row_' in mods:
                self.dpp = True
                self.r |= R[0]
            if op.startswith('v_cndmask') and n == 3:
                self.r |= regs_of('vcc')
        elif op.startswith('buffer_') or op.startswith('global_'):
            self.kind = 'vmem'
            lds = (' lds' in ' ' + mods) or '_lds_' in op
            if op in ('buffer_inv', 'buffer_wbl2'):
                pass
            elif 'store' in op or ('atomic' in op):
                self.r = allr(range(n))
                if op.startswith('buffer_'):
                    self.sdata = R[0]
                else:
                    self.sdata = R[1]
                if 'atomic' in op and 'sc0' in mods:
                    self.w = R[0]
                if not ('x3' in op or 'x4' in op):
                    self.sdata = set()
            elif lds:
                self.r = allr(range(n)) | regs_of('m0')
                self.kind = 'vmem_lds'
            else:
                self.w = R[0]
                self.r = allr(range(1, n))
        elif op.startswith('ds_'):
            self.kind = 'ds'
            if op.startswith(('ds_write', 'ds_add')):
                self.r = allr(range(n))
            else:
                self.w = R[0]
                self.r = allr(range(1, n))
        elif op.startswith('s_'):
            self.kind = 'salu'
            if op == 's_nop':
                self.states = int(ops[0], 0) + 1
            elif op.startswith(('s_cbranch', 's_branch')):
                self.kind = 'branch'
                self.target = ops[0]
            elif op == 's_endpgm':
                self.kind = 'end'
            elif op.startswith(('s_cmp', 's_bitcmp', 's_waitcnt', 's_barrier', 's_setprio', 's_sleep')):
                self.r = allr(range(n))
            elif 'saveexec' in op:
                self.w = R[0] | regs_of('exec')
                self.r = allr(range(1, n)) | regs_of('exec')
            else:
                self.w = R[0] if n else set()
                self.r = allr(range(1, n))
        else:
            raise ValueError('unknown instruction: ' + text)


def _vg(s):
    return {x for x in s if x[0] in 'va'}


def _sg(s):
    return {x for x in s if x[0] == 's'}


def need_states(p, c):
    n = 0
    pk, ck = p.kind, c.kind
    if pk == 'valu':
        pwv, pws = _vg(p.w), _sg(p.w)
        if ck == 'mfma' and pwv & c.r:
            n = max(n, 2)
        if ck == 'valu':
            if p.op in TRANS and c.op not in TRANS and pwv & c.r:
                n = max(n, 1)
            if p.op in TRANS and c.op in TRANS and pwv & c.r:
                n = max(n, 1)
            if c.dpp and pwv & c.r:
                n = max(n, 2)
            if c.op.startswith('v_permlane') and pwv & c.r:
                n = max(n, 2)
            if c.op.startswith(('v_readlane', 'v_readfirstlane')) and pwv & c.r:
                n = max(n, 1)
            if pws & c.r:
                n = max(n, 4 if c.op.startswith(('v_readlane', 'v_writelane')) else 2)
            if ('s', 'exec_lo') in p.w:
                n = max(n, 5 if c.dpp else 4 if c.op.startswith(('v_permlane', 'v_read')) else 0)
        if ck == 'mfma' and ('s', 'exec_lo') in p.w:
            n = max(n, 4)
        if ck in ('vmem', 'vmem_lds') and pws & c.r:
            n = max(n, 5)
        if ck in ('salu', 'branch') and pws & c.r:
            n = max(n, 1)
    if pk == 'mfma':
        big = {4: 8, 8: 12}[p.passes]
        if ck == 'mfma':
            if p.w & c.srcab:
                n = max(n, big)
            if p.w & c.srcc:
                if not (p.w == c.srcc and p.passes == c.passes):
                    n = max(n, big - 2)
            if (p.w & c.w) and not (p.w == c.srcc and p.w == c.w):
                n = max(n, big)
        elif ck in ('valu', 'vmem', 'vmem_lds', 'ds'):
            if p.w & (c.r | c.w):
                n = max(n, big)
            if ck == 'valu' and p.srcc & c.w:
                n = max(n, {4: 3, 8: 7}[p.passes])
    if pk == 'salu' and ('s', 'm0') in p.w and ck == 'vmem_lds':
        n = max(n, 1)
    if pk == 'vmem' and p.sdata and (p.sdata & c.w):
        n = max(n, 2 if ck == 'valu' else 1)
    return n


MAXD = 13


def pad_hazards(lines):
    ins = [Ins(l) for l in lines]
    labels = {i.label: k for k, i in enumerate(ins) if i.label}
    preds_jump = {}
    for k, i in enumerate(ins):
        if i.kind == 'branch':
            preds_jump.setdefault(labels[i.target], []).append(k)
    extra = [0] * len(ins)

    def walk(k, dist, c, seen):
        need = 0
        j = k - 1
        while j >= 0 and dist < MAXD:
            p = ins[j]
            if p.kind == 'label':
                for b in preds_jump.get(j, []):
                    if (b, dist) not in seen:
                        seen.add((b, dist))
                        need = max(need, walk(b + 1, dist, c, seen) if False else walk_from(b, dist, c, seen))
            if p.kind == 'end' or p.op == 's_branch':
                break
            if p.states:
                ns = need_states(p, c)
                if ns > dist:
                    need = max(need, ns - dist)
                dist += p.states
            dist += extra[j]
            j -= 1
        return need

    def walk_from(b, dist, c, seen):
        d = dist + 1 + extra[b]
        return walk(b, d, c, seen)

    out = []
    for k, c in enumerate(ins):
        if c.states and c.kind in ('valu', 'mfma', 'vmem', 'vmem_lds', 'ds', 'salu', 'branch'):
            need = walk(k, 0, c, set())
            if need:
                extra[k] = need
                out.append('    s_nop %d' % (need - 1))
        out.append(c.text)
    return out


class Asm:
    def __init__(self):
        self.lines = []
        self._lbl = 0

    def __call__(self, s):
        for l in s.split('\n'):
            l = l.strip()
            if l:
                self.lines.append(l if l.endswith(':') else '    ' + l)

    def label(self, name):
        self.lines.append(name + ':')

    def newlabel(self, base='L'):
        Asm._glob = getattr(Asm, '_glob', 0) + 1
        return '%s_%d' % (base, Asm._glob)

    def finish(self):
        return pad_hazards(self.lines)


def vr(base, n=1):
    return 'v%d' % base if n == 1 else 'v[%d:%d]' % (base, base + n - 1)


def sr(base, n=1):
    return 's%d' % base if n == 1 else 's[%d:%d]' % (base, base + n - 1)


def ar(base, n=1):
    return 'a%d' % base if n == 1 else 'a[%d:%d]' % (base, base + n - 1)
```

```python
from asmlib import *
import math

OPT = dict(ty3=0, usl=8, frsl=20, zsl=16, rot1=0, rot2=0, t3f=43, t3l=261, t4f=261, t4l=341, pf0=1, pfg1=1, pf0last=120, a1f=120, a1l=184, a2f=184, a2l=256, a3f=256, a3l=342)


def pol(name):
    return ['', ' nt', ' sc1', ' sc0 sc1', ' sc1 nt'][OPT.get(name, 0)]


def tpair(name='tp'):
    return [[''], [' nt'], [' nt', ' sc0']][OPT.get(name, OPT.get('tp', 0))]


K_X, K_WR, K_WI, K_BX, K_W1, K_B1, K_W2, K_B2, K_C, K_WMOD, K_OUT, K_DBG, K_WS = [8 * i for i in range(13)]

S, D, F = 2048, 576, 4608
NCOL = 289

WS_MOD = 0x0
WS_FLAGS = 0x10000
WS_MODP = 0x20000
WS_FLG = 0x40000
WS_WT = 0x100000
WS_HB = 0x400000
WS_ZB = 0x700000
WS_X1 = 0xA00000
WS_H2 = 0xD00000
WS_U = 0x1000000
WS_PART = 0x1800000
WS_STAMP = 0x4000000

SZ_MOD = 3456 * 4
SZ_COL = NCOL * 8192
SZ_X = S * D * 2
SZ_U = D * F * 2
SZ_W = S * F * 2

LOG2E = 1.4426950408889634


def sdiv(a, q, r, x, d, lim=1024):
    for sh in range(8, 22):
        m = -(-(1 << sh) // d)
        if all((w * m) >> sh == w // d for w in range(lim)):
            break
    else:
        raise ValueError
    a(f's_mul_i32 s{q}, s{x}, {m}')
    a(f's_lshr_b32 s{q}, s{q}, {sh}')
    a(f's_mul_i32 s{r}, s{q}, {d}')
    a(f's_sub_u32 s{r}, s{x}, s{r}')


def srd(a, dst, lo, off, nbytes):
    if off:
        a(f's_add_u32 s{dst}, s{lo}, {off:#x}')
        a(f's_addc_u32 s{dst+1}, s{lo+1}, 0')
    else:
        a(f's_mov_b32 s{dst}, s{lo}')
        a(f's_mov_b32 s{dst+1}, s{lo+1}')
    a(f's_mov_b32 s{dst+2}, {nbytes:#x}')
    a(f's_mov_b32 s{dst+3}, 0x20000')


def round_bf16(a, dst, src):
    a(f'v_cvt_pk_bf16_f32 v{dst}, v{src}, v{src}')
    a(f'v_lshlrev_b32 v{dst}, 16, v{dst}')


def round_bf16_pair(a, d0, d1, s0, s1, tmp, smask):
    a(f'v_cvt_pk_bf16_f32 v{tmp}, v{s0}, v{s1}')
    a(f'v_lshlrev_b32 v{d0}, 16, v{tmp}')
    a(f'v_and_b32 v{d1}, s{smask}, v{tmp}')


def round_list(a, regs, tmp, smask):
    i = 0
    while i + 1 < len(regs):
        round_bf16_pair(a, regs[i], regs[i + 1], regs[i], regs[i + 1], tmp + (i // 2) % 2, smask)
        i += 2
    if i < len(regs):
        round_bf16(a, regs[i], regs[i])


DPPM = 'row_mask:0xf bank_mask:0xf'


def row16_sum(a, regs):
    for pat in ('quad_perm:[1,0,3,2]', 'quad_perm:[2,3,0,1]', 'row_half_mirror', 'row_mirror'):
        for r in regs:
            a(f'v_add_f32_dpp v{r}, v{r}, v{r} {pat} {DPPM}')


def wave_sum(a, r, t):
    row16_sum(a, [r])
    for sw in ('v_permlane16_swap_b32', 'v_permlane32_swap_b32'):
        a(f'v_mov_b32 v{t}, v{r}')
        a(f'{sw} v{r}, v{t}')
        a(f'v_add_f32 v{r}, v{r}, v{t}')


class Kernel:
    def __init__(self, name, grid, block, lds, vgprs, sgprs=100, agprs=0, stamp_id=None, mid_base=80):
        self.name, self.grid, self.block, self.lds = name, grid, block, lds
        self.vgprs, self.sgprs, self.agprs = vgprs, sgprs, agprs
        self.a = Asm()
        self.stamp_id = stamp_id
        self.mid_base = mid_base
        self.stw = 0
        self.nm = 0
        self.sel = []

    def stamp_begin(self):
        if self.stamp_id is None:
            return
        self.a('s_memrealtime s[90:91]')
        for i in range(len(self.sel)):
            self.a(f's_mov_b64 s[{self.mid_base + 2 * i}:{self.mid_base + 2 * i + 1}], 0')

    def stamp_mid(self, k):
        if self.stamp_id is None:
            return
        b = self.mid_base + 2 * k
        self.a(f's_memrealtime s[{b}:{b + 1}]')

    def mid(self, name=''):
        self.stamp_mid(self.nm)
        self.nm += 1

    def mark(self, name, clk=False):
        if self.stamp_id is None or name not in self.sel:
            return
        b = self.mid_base + 2 * self.sel.index(name)
        self.a(f's_{"memtime" if clk else "memrealtime"} s[{b}:{b + 1}]')

    def markv(self, name, sreg):
        if self.stamp_id is None or name not in self.sel:
            return
        b = self.mid_base + 2 * self.sel.index(name)
        self.a(f's_mul_i32 s{b}, s{sreg}, 100')
        self.a(f's_add_u32 s{b}, s{b}, s90')
        self.a(f's_addc_u32 s{b + 1}, s91, 0')

    def stamp_clk(self, k):
        if self.stamp_id is None:
            return
        b = self.mid_base + 2 * k
        self.a(f's_memtime s[{b}:{b + 1}]')

    def stamp_end(self, nmid=0):
        if self.stamp_id is None:
            return
        a = self.a
        a('s_waitcnt lgkmcnt(0)')
        a('s_memrealtime s[92:93]')
        dm = OPT.get('dbgst', 0)
        if 'mprobe' in OPT:
            t = OPT['mprobe']
            lbl = a.newlabel('mp')
            a(f's_load_dwordx2 s[96:97], s[0:1], {K_BX if t in (1, 2) else K_WS}')
            a('s_mov_b64 exec, -1')
            a('v_and_b32 v1, 63, v0')
            a.label(lbl + '_a')
            a('s_sleep 1')
            a('s_memrealtime s[92:93]')
            a('s_waitcnt lgkmcnt(0)')
            a('s_sub_u32 s95, s92, s90')
            a('s_cmp_lt_u32 s95, 5500')
            a(f's_cbranch_scc1 {lbl}_a')
            a(f's_mov_b32 s98, {SZ_X if t in (1, 2) else 0x10000000}')
            a('s_mov_b32 s99, 0x20000')
            sfx = ' nt' if t in (2, 6) else ''
            if t in (1, 2):
                a('s_cmp_eq_u32 s3, 0')
                a(f's_cbranch_scc0 {lbl}')
                a('s_mul_i32 s94, s2, 9216')
                a('v_lshlrev_b32 v2, 7, v1')
            elif t in (3, 6):
                a('s_lshl_b32 s94, s2, 3')
                a('s_add_u32 s94, s94, s3')
                a('s_lshl_b32 s94, s94, 13')
                a('s_add_u32 s94, s94, 0x8000000')
                a('v_lshlrev_b32 v2, 7, v1')
            else:
                a('s_lshl_b32 s94, s2, 3')
                a('s_add_u32 s94, s94, s3')
                a('s_lshl_b32 s94, s94, 12')
                a('s_add_u32 s94, s94, 0x8000000')
                a('v_lshlrev_b32 v2, 4, v1')
            a('s_memrealtime s[92:93]')
            a('s_waitcnt vmcnt(0) lgkmcnt(0)')
            if t in (1, 2, 3, 6):
                a('buffer_load_dword v3, v2, s[96:99], s94 offen' + sfx)
            elif t in (4, 5, 7):
                for i in range(4):
                    a(f'buffer_store_dwordx4 v[4:7], v2, s[96:99], s94 offen offset:{1024 * i}' + {4: ' sc1', 5: ' sc1 nt', 7: ' sc0 sc1'}[t])
            a('s_waitcnt vmcnt(0)')
            a('s_memrealtime s[94:95]')
            a('s_waitcnt lgkmcnt(0)')
            a('s_sub_u32 s94, s94, s92')
            a('s_mul_i32 s94, s94, 40')
            a('s_add_u32 s94, s94, 6000')
            a('s_min_u32 s94, s94, 40000')
            a.label(lbl + '_l')
            a('s_sleep 1')
            a('s_memrealtime s[92:93]')
            a('s_waitcnt lgkmcnt(0)')
            a('s_sub_u32 s95, s92, s90')
            a('s_cmp_lt_u32 s95, s94')
            a(f's_cbranch_scc1 {lbl}_l')
            a.label(lbl)
            return
        if 'probe' in OPT:
            lbl = a.newlabel('probe')
            lo, hi = OPT.get('dbglo', 0), OPT.get('dbghi', 256)
            a('s_waitcnt lgkmcnt(0)')
            a(f's_sub_u32 s94, s2, {lo}')
            a(f's_cmp_lt_u32 s94, {hi - lo}')
            a(f's_cbranch_scc0 {lbl}')
            a(f's_cmp_eq_u32 s3, {self.stw}')
            a(f's_cbranch_scc0 {lbl}')
            i = OPT['probe']
            r = 90 if i == 99 else 92 if i == 98 else self.mid_base + 2 * i
            a(f's_sub_u32 s94, s{r}, s90')
            a(f's_cmp_eq_u32 s{r}, 0')
            a('s_cselect_b32 s94, 0, s94')
            a('s_lshl_b32 s94, s94, 2')
            a('s_add_u32 s94, s94, 6000')
            a('s_min_u32 s94, s94, 40000')
            a.label(lbl + '_l')
            a('s_sleep 1')
            a('s_memrealtime s[92:93]')
            a('s_waitcnt lgkmcnt(0)')
            a('s_sub_u32 s95, s92, s90')
            a('s_cmp_lt_u32 s95, s94')
            a(f's_cbranch_scc1 {lbl}_l')
            a.label(lbl)
            return
        a(f's_load_dwordx2 s[96:97], s[0:1], {K_DBG if dm else K_WS}')
        a('s_waitcnt lgkmcnt(0)')
        lbl = a.newlabel(self.name + '_st')
        a(f'v_cmp_eq_u32 vcc, {64 * self.stw}, v0')
        a('s_and_b64 exec, exec, vcc')
        a(f's_cbranch_execz {lbl}')
        if dm:
            srd(a, 96, 96, 0, 256)
            vb = self.vgprs - 4
            a('s_not_b32 s94, s90')
            a(f'v_mov_b32 v{vb}, s94')
            a(f'buffer_atomic_umax v{vb}, off, s[96:99], 0 offset:4 sc1')
            lo, hi = OPT.get('dbglo', 0), OPT.get('dbghi', 256)
            a(f's_sub_u32 s94, s2, {lo}')
            a(f's_cmp_lt_u32 s94, {hi - lo}')
            a(f's_cbranch_scc0 {lbl}')
            for k, r in enumerate([self.mid_base + 2 * i for i in range(min(nmid, 13))] + [92]):
                if dm == 2:
                    a(f's_not_b32 s94, s{r}')
                    a(f's_cmp_eq_u32 s{r}, 0')
                    a('s_cselect_b32 s94, 0, s94')
                else:
                    a(f's_mov_b32 s94, s{r}')
                a('s_nop 1')
                a(f'v_mov_b32 v{vb + k % 4}, s94')
                a(f'buffer_atomic_umax v{vb + k % 4}, off, s[96:99], 0 offset:{8 + 4 * k} sc1')
            a.label(lbl)
            return
        srd(a, 96, 96, WS_STAMP + self.stamp_id * 1024 * 128, 1024 * 128)
        a('s_lshl_b32 s94, s2, 7')
        vb = self.vgprs - 4
        a(f'v_mov_b32 v{vb}, s90')
        a(f'v_mov_b32 v{vb+1}, s91')
        a(f'v_mov_b32 v{vb+2}, s92')
        a(f'v_mov_b32 v{vb+3}, s93')
        a(f'buffer_store_dwordx4 v[{vb}:{vb+3}], off, s[96:99], s94')
        for k in range(nmid):
            a('s_nop 1')
            a(f'v_mov_b32 v{vb}, s{self.mid_base + 2 * k}')
            a(f'v_mov_b32 v{vb+1}, s{self.mid_base + 1 + 2 * k}')
            a(f'buffer_store_dwordx2 v[{vb}:{vb+1}], off, s[96:99], s94 offset:{16 + 8 * k}')
        a.label(lbl)

    def text(self):
        body = self.a.finish()
        out = [f'.globl {self.name}', '.p2align 8', f'.type {self.name},@function', f'{self.name}:']
        out += body
        return out

    def desc(self):
        acc = (self.vgprs + 3) // 4 * 4
        nfv = acc + self.agprs if self.agprs else self.vgprs
        return [
            '.section .rodata,"a"', '.p2align 6', f'.amdhsa_kernel {self.name}',
            f'  .amdhsa_next_free_vgpr {nfv}',
            f'  .amdhsa_next_free_sgpr {self.sgprs}',
            f'  .amdhsa_accum_offset {acc}',
            '  .amdhsa_group_segment_fixed_size 0',
            '  .amdhsa_kernarg_size 104',
            '  .amdhsa_user_sgpr_count 2',
            '  .amdhsa_user_sgpr_kernarg_segment_ptr 1',
            '  .amdhsa_system_sgpr_workgroup_id_x 1',
            '.end_amdhsa_kernel']

    def launch(self):
        return f'; @launch kernel={self.name} grid=({self.grid},1,1) block=({self.block},1,1) lds={self.lds}'


def touch_w1(a, sw, vt, vd, sb, part=0, nparts=1):
    a(f's_load_dwordx2 s[{sb}:{sb + 1}], s[0:1], {K_W1}')
    a(f's_and_b32 s{sb + 4}, s2, 7')
    a(f's_mul_i32 s{sb + 4}, s{sb + 4}, {27 * 171}')
    a(f's_lshr_b32 s{sb + 4}, s{sb + 4}, 10')
    a(f's_lshl_b32 s{sb + 4}, s{sb + 4}, 8')
    a(f's_lshr_b32 s{sb + 5}, s2, 3')
    a(f's_lshl_b32 s{sb + 5}, s{sb + 5}, 3')
    a(f's_add_u32 s{sb + 5}, s{sb + 5}, s{sw}')
    a(f's_mul_i32 s{sb + 5}, s{sb + 5}, {8 * F * 2}')
    a(f's_add_u32 s{sb + 4}, s{sb + 4}, s{sb + 5}')
    a(f'v_lshrrev_b32 v{vt}, 3, v1')
    a(f'v_mul_u32_u24 v{vt}, {F * 2}, v{vt}')
    a(f'v_and_b32 v{vt + 1}, 7, v1')
    a(f'v_lshl_add_u32 v{vt}, v{vt + 1}, 7, v{vt}')
    a(f'v_and_b32 v{vt + 1}, 6, v1')
    a(f'v_lshlrev_b32 v{vt + 1}, 7, v{vt + 1}')
    a(f'v_sub_u32 v{vt + 1}, v{vt}, v{vt + 1}')
    a('s_waitcnt lgkmcnt(0)')
    a(f's_mov_b32 s{sb + 2}, {SZ_W:#x}')
    a(f's_mov_b32 s{sb + 3}, 0x20000')
    offs = [0, 64] if OPT.get('t64') else [0]
    for o in offs:
        a(f'buffer_load_dword v{vd}, v{vt}, s[{sb}:{sb + 3}], s{sb + 4} offen offset:{o}' + pol('p_pf1'))
        a(f'buffer_load_dword v{vd}, v{vt + 1}, s[{sb}:{sb + 3}], s{sb + 4} offen offset:{1024 + o}' + pol('p_pf1'))
    return 2 * len(offs)


def touch_w2(a, sw, vt, vd, sb, mod=''):
    a(f's_load_dwordx2 s[{sb}:{sb + 1}], s[0:1], {K_W2}')
    a(f's_and_b32 s{sb + 4}, s2, 1')
    a(f's_lshl_b32 s{sb + 4}, s{sb + 4}, 11')
    a(f's_bfe_u32 s{sb + 5}, s2, 0x20001')
    a(f's_mul_i32 s{sb + 5}, s{sb + 5}, 1152')
    a(f's_lshr_b32 s{sb + 6}, s2, 3')
    a(f's_mul_i32 s{sb + 6}, s{sb + 6}, 36')
    a(f's_add_u32 s{sb + 5}, s{sb + 5}, s{sb + 6}')
    a(f's_lshl_b32 s{sb + 5}, s{sb + 5}, 12')
    a(f's_add_u32 s{sb + 4}, s{sb + 4}, s{sb + 5}')
    a(f's_lshl_b32 s{sb + 5}, s{sw}, 14')
    a(f's_add_u32 s{sb + 5}, s{sb + 5}, s{sb + 4}')
    a(f's_add_u32 s{sb + 4}, s{sb + 4}, {32 * 4096}')
    a(f'v_lshrrev_b32 v{vt}, 4, v1')
    a(f'v_lshlrev_b32 v{vt}, 12, v{vt}')
    a(f'v_and_b32 v{vt + 1}, 15, v1')
    a(f'v_lshl_add_u32 v{vt}, v{vt + 1}, 7, v{vt}')
    a('s_waitcnt lgkmcnt(0)')
    a(f's_mov_b32 s{sb + 2}, {SZ_W:#x}')
    a(f's_mov_b32 s{sb + 3}, 0x20000')
    offs = [0, 64] if OPT.get('t64') else [0]
    for o in offs:
        a(f'buffer_load_dword v{vd}, v{vt}, s[{sb}:{sb + 3}], s{sb + 5} offen offset:{o} {mod}')
        a(f'buffer_load_dword v{vd}, v{vt}, s[{sb}:{sb + 3}], s{sb + 4} offen offset:{o} {mod}')
    return 2 * len(offs)


def pf_w1_body(a, sx, sj, nw, sb, vt, vd, rev=True, first=0, last=342, depth=None):
    a(f's_load_dwordx2 s[{sb}:{sb + 1}], s[0:1], {K_W1}')
    a(f's_mul_i32 s{sb + 4}, s{sx}, {27 * 171}')
    a(f's_lshr_b32 s{sb + 4}, s{sb + 4}, 10')
    a(f's_lshl_b32 s{sb + 4}, s{sb + 4}, 8')
    a(f'v_mul_u32_u24 v{vt}, 26, v1')
    a(f'v_lshrrev_b32 v{vt}, 8, v{vt}')
    a(f'v_mul_u32_u24 v{vt + 1}, {F * 2 - 1280}, v{vt}')
    a(f'v_lshl_add_u32 v{vt}, v1, 7, v{vt + 1}')
    n = last - first
    reps = (n + nw - 1) // nw
    step = 6 * F * 2
    if rev:
        a(f's_sub_u32 s{sb + 5}, {last - 1}, s{sj}')
    else:
        a(f's_add_u32 s{sb + 5}, {first}, s{sj}')
    a(f's_mul_i32 s{sb + 5}, s{sb + 5}, {step}')
    a(f's_add_u32 s{sb + 5}, s{sb + 5}, s{sb + 4}')
    a('s_waitcnt lgkmcnt(0)')
    a(f's_mov_b32 s{sb + 2}, {SZ_W:#x}')
    a(f's_mov_b32 s{sb + 3}, 0x20000')
    for r in range(reps):
        if (r + 1) * nw > n:
            lab = a.newlabel('pfskip')
            a(f's_cmp_lt_u32 s{sj}, {n - r * nw}')
            a(f's_cbranch_scc0 {lab}')
        if depth is not None and r >= depth:
            a(f's_waitcnt vmcnt({depth - 1})')
        a(f'buffer_load_dword v{vd}, v{vt}, s[{sb}:{sb + 3}], s{sb + 5} offen' + pol('p_pf1'))
        if (r + 1) * nw > n:
            a.label(lab)
        else:
            a(f's_{"sub" if rev else "add"}_u32 s{sb + 5}, s{sb + 5}, {nw * step}')


def pf_w2_body(a, sx, sj, nw, sb, vt, vd, first=0, last=288, depth=None):
    a(f's_load_dwordx2 s[{sb}:{sb + 1}], s[0:1], {K_W2}')
    a(f's_and_b32 s{sb + 4}, s{sx}, 1')
    a(f's_lshl_b32 s{sb + 4}, s{sb + 4}, 11')
    a(f's_lshr_b32 s{sb + 5}, s{sx}, 1')
    a(f's_mul_i32 s{sb + 5}, s{sb + 5}, {1152 * 4096}')
    a(f's_add_u32 s{sb + 4}, s{sb + 4}, s{sb + 5}')
    a(f's_add_u32 s{sb + 5}, {first}, s{sj}')
    a(f's_lshl_b32 s{sb + 5}, s{sb + 5}, 14')
    a(f's_add_u32 s{sb + 5}, s{sb + 5}, s{sb + 4}')
    a(f'v_lshrrev_b32 v{vt}, 4, v1')
    a(f'v_lshlrev_b32 v{vt}, 12, v{vt}')
    a(f'v_and_b32 v{vt + 1}, 15, v1')
    a(f'v_lshl_add_u32 v{vt}, v{vt + 1}, 7, v{vt}')
    a('s_waitcnt lgkmcnt(0)')
    a(f's_mov_b32 s{sb + 2}, {SZ_W:#x}')
    a(f's_mov_b32 s{sb + 3}, 0x20000')
    n = last - first
    reps = (n + nw - 1) // nw
    for r in range(reps):
        if (r + 1) * nw > n:
            lab = a.newlabel('pfskip')
            a(f's_cmp_lt_u32 s{sj}, {n - r * nw}')
            a(f's_cbranch_scc0 {lab}')
        if depth is not None and r >= depth:
            a(f's_waitcnt vmcnt({depth - 1})')
        a(f'buffer_load_dword v{vd}, v{vt}, s[{sb}:{sb + 3}], s{sb + 5} offen' + pol('p_pf2'))
        if (r + 1) * nw > n:
            a.label(lab)
        else:
            a(f's_add_u32 s{sb + 5}, s{sb + 5}, {nw << 14}')
```

```python
from common import *

EPS = 1e-5


def gen_f64_interleaved(a, nf, base, fre, fim, t, first=0, last=16):
    items = [(ks, q) for ks in range(4) for q in range(4)][first:last]
    if not items:
        return
    for idx, (ks, q) in enumerate(items):
        ta = t + 3 * (idx % 2)
        a(f'v_fmamk_f32 v{ta}, v{nf}, {f32((16 * ks + q) / 64.0)}, v{base}')
        a(f'v_cos_f32 v{ta + 1}, v{ta}')
        a(f'v_sin_f32 v{ta + 2}, v{ta}')
        if idx >= 1:
            pks, pq = items[idx - 1]
            pa = t + 3 * ((idx - 1) % 2)
            a(f'v_cvt_pk_bf16_f32 v{fre + 4 * pks + pq}, v{pa + 1}, v{pa + 2}')
            a(f'v_cvt_pk_bf16_f32 v{fim + 4 * pks + pq}, -v{pa + 2}, v{pa + 1}')
    pks, pq = items[-1]
    pa = t + 3 * ((len(items) - 1) % 2)
    a(f'v_cvt_pk_bf16_f32 v{fre + 4 * pks + pq}, v{pa + 1}, v{pa + 2}')
    a(f'v_cvt_pk_bf16_f32 v{fim + 4 * pks + pq}, -v{pa + 2}, v{pa + 1}')


def gen_planar(a, nf, base, N, nks, fre, fim, t, signs):
    sg = lambda s: '-' if s < 0 else ''
    for ks in range(nks):
        for q in range(4):
            a(f'v_fmamk_f32 v{t + q}, v{nf}, {f32((16 * ks + q) / float(N))}, v{base}')
        for q in range(4):
            a(f'v_cos_f32 v{t + 4 + q}, v{t + q}')
            a(f'v_sin_f32 v{t + 8 + q}, v{t + q}')
        s1, s2, s3 = signs(ks)
        c, s = t + 4, t + 8
        r, i = fre + 4 * ks, fim + 4 * ks
        a(f'v_cvt_pk_bf16_f32 v{r}, v{c}, v{c + 1}')
        a(f'v_cvt_pk_bf16_f32 v{r + 1}, v{c + 2}, v{c + 3}')
        a(f'v_cvt_pk_bf16_f32 v{i + 2}, {sg(s3)}v{c}, {sg(s3)}v{c + 1}')
        a(f'v_cvt_pk_bf16_f32 v{i + 3}, {sg(s3)}v{c + 2}, {sg(s3)}v{c + 3}')
        a(f'v_cvt_pk_bf16_f32 v{r + 2}, {sg(s1)}v{s}, {sg(s1)}v{s + 1}')
        a(f'v_cvt_pk_bf16_f32 v{r + 3}, {sg(s1)}v{s + 2}, {sg(s1)}v{s + 3}')
        a(f'v_cvt_pk_bf16_f32 v{i}, {sg(s2)}v{s}, {sg(s2)}v{s + 1}')
        a(f'v_cvt_pk_bf16_f32 v{i + 1}, {sg(s2)}v{s + 2}, {sg(s2)}v{s + 3}')


C9 = [math.cos(2 * math.pi * m / 9) for m in range(9)]
S9 = [math.sin(2 * math.pi * m / 9) for m in range(9)]


def ln_finish(a, mean, var, t, smask):
    round_bf16(a, mean, mean)
    round_bf16(a, var, var)
    a(f'v_add_f32 v{var}, {f32(EPS)}, v{var}')
    round_bf16(a, var, var)
    a(f'v_sqrt_f32 v{var}, v{var}')
    round_bf16(a, var, var)
    a(f'v_rcp_f32 v{var}, v{var}')


def ln_apply(a, xs, mean, rstd, t, smask):
    for x in xs:
        a(f'v_sub_f32 v{x}, v{x}, v{mean}')
    round_list(a, xs, t, smask)
    for x in xs:
        a(f'v_mul_f32 v{x}, v{x}, v{rstd}')
    round_list(a, xs, t, smask)


def modulate(a, xs, sc, sh, t, smask):
    for i, x in enumerate(xs):
        a(f'v_mul_f32 v{x}, v{x}, v{sc + i}')
    round_list(a, xs, t, smask)
    for i, x in enumerate(xs):
        a(f'v_add_f32 v{x}, v{x}, v{sh + i}')
    round_list(a, xs, t, smask)


P1_STRIDE = 272


def pf_hook(a, name, nwg_x, nwave, vt, vd, sb):
    first, last = OPT.get(name + 'f', 0), OPT.get(name + 'l', 0)
    if last <= first:
        return
    a(f's_mul_i32 s{sb + 6}, s3, {nwg_x}')
    a(f's_lshr_b32 s{sb + 7}, s2, 3')
    a(f's_add_u32 s{sb + 6}, s{sb + 6}, s{sb + 7}')
    a(f's_and_b32 s{sb + 7}, s2, 7')
    pf_w1_body(a, sb + 7, sb + 6, nwg_x * nwave, sb, vt, vd, rev=False, first=first, last=last)


def build_p1(stamp=None):
    k = Kernel('p1_kernel', 256, 512, 48 * P1_STRIDE, 136, stamp_id=stamp)
    a = k.a
    k.stamp_begin()
    a('s_cmp_ge_u32 s2, 256')
    a('s_cbranch_scc1 p1_done')
    a(f's_load_dwordx2 s[4:5], s[0:1], {K_WS}')
    a(f's_load_dwordx2 s[6:7], s[0:1], {K_X}')
    X = 8
    SA, CA = 20, 30
    FRE, FIM = 40, 56
    TW = 72
    T = 80
    a('v_and_b32 v1, 63, v0')
    a('v_lshrrev_b32 v2, 6, v0')
    a('v_readfirstlane_b32 s3, v2')
    a('s_and_b32 s24, s2, 7')
    a('s_lshr_b32 s25, s2, 3')
    a('s_and_b32 s26, s25, 3')
    a('s_lshr_b32 s25, s25, 2')
    a('s_lshl_b32 s25, s25, 3')
    a('s_add_u32 s24, s24, s25')
    a('s_and_b32 s25, s24, 3')
    a('s_lshl_b32 s25, s25, 2')
    a('s_add_u32 s26, s26, s25')
    a('s_lshl_b32 s26, s26, 1')
    a('s_lshr_b32 s27, s24, 2')
    a('s_and_b32 s28, s3, 3')
    a('s_lshr_b32 s29, s3, 2')
    a('s_lshl_b32 s30, s27, 2')
    a('s_add_u32 s30, s30, s28')
    a('s_lshl_b32 s30, s30, 5')
    a('s_add_u32 s30, s30, s26')
    a('s_add_u32 s30, s30, s29')
    a('s_mul_i32 s30, s30, 1152')
    a('v_lshlrev_b32 v3, 1, v1')
    a('v_lshlrev_b32 v4, 2, v1')
    for i in range(9):
        a(f'v_mov_b32 v{X + i}, 0')
    a('s_movk_i32 s31, 2304')
    a('s_mov_b32 s32, 0xffff0000')
    a('s_waitcnt lgkmcnt(0)')
    srd(a, 8, 6, 0, SZ_X)
    srd(a, 12, 4, WS_MOD, SZ_MOD)
    srd(a, 16, 4, WS_HB, SZ_COL)
    for i in range(9):
        a(f'buffer_load_short_d16_hi v{X + i}, v3, s[8:11], s30 offen offset:{128 * i}' + pol('p_in'))
    for i in range(9):
        a(f'buffer_load_dword v{CA + i}, v4, s[12:15], s31 offen offset:{256 * i}')
    for i in range(9):
        a(f'buffer_load_dword v{SA + i}, v4, s[12:15], 0 offen offset:{256 * i}')
    a('v_and_b32 v5, 15, v1')
    a('v_lshrrev_b32 v6, 4, v1')
    a('s_lshl_b32 s33, s28, 4')
    a('v_add_u32 v7, s33, v5')
    a(f'v_cvt_f32_u32 v{T + 10}, v7')
    a(f'v_cvt_f32_u32 v{T + 11}, v6')
    a(f'v_mul_f32 v{T + 11}, v{T + 11}, v{T + 10}')
    a(f'v_mul_f32 v{T + 11}, {f32(4 / 64.0)}, v{T + 11}')
    gen_f64_interleaved(a, T + 10, T + 11, FRE, FIM, T)
    a(f'v_cvt_f32_u32 v{T + 10}, v1')
    for k1 in range(1, 5):
        a(f'v_mul_f32 v{T + k1}, {f32(k1 / 576.0)}, v{T + 10}')
    for k1 in range(1, 5):
        a(f'v_cos_f32 v{TW + 2 * (k1 - 1)}, v{T + k1}')
        a(f'v_sin_f32 v{TW + 2 * (k1 - 1) + 1}, v{T + k1}')
    NT = 0
    if OPT.get('pf2'):
        NT = touch_w2(a, 3, 104, 128, 48, pol('p_pf2'))
    a('s_lshl_b32 s33, s29, 2')
    a('s_add_u32 s33, s33, s28')
    a(f's_mul_i32 s33, s33, {P1_STRIDE}')
    a('v_add_u32 v100, s33, v4')
    a(f's_mul_i32 s33, s29, {32 * P1_STRIDE}')
    a(f'v_mul_u32_u24 v101, {P1_STRIDE}, v5')
    a('v_lshl_add_u32 v101, v6, 4, v101')
    a('v_add_u32 v101, s33, v101')
    xs = [X + i for i in range(9)]
    a(f's_waitcnt vmcnt({18 + NT})')
    k.stamp_mid(0)
    k.stamp_clk(3)
    M, V = T + 8, T + 9
    a(f'v_add_f32 v{M}, v{X}, v{X + 1}')
    for i in range(2, 9):
        a(f'v_add_f32 v{M}, v{M}, v{X + i}')
    wave_sum(a, M, T)
    a(f'v_mul_f32 v{M}, {f32(1 / 576.0)}, v{M}')
    a(f'v_sub_f32 v{T}, v{X}, v{M}')
    a(f'v_mul_f32 v{V}, v{T}, v{T}')
    for i in range(1, 9):
        a(f'v_sub_f32 v{T + i % 2}, v{X + i}, v{M}')
        a(f'v_fmac_f32 v{V}, v{T + i % 2}, v{T + i % 2}')
    wave_sum(a, V, T)
    a(f'v_mul_f32 v{V}, {f32(1 / 576.0)}, v{V}')
    ln_finish(a, M, V, T, 32)
    ln_apply(a, xs, M, V, T, 32)
    a(f's_waitcnt vmcnt({NT})')
    pf_hook(a, 'a1', 32, 8, 104, 128, 48)
    modulate(a, xs, CA, SA, T, 32)
    P, Q = SA, SA + 4
    for j in range(1, 5):
        a(f'v_add_f32 v{P + j - 1}, v{X + j}, v{X + 9 - j}')
        a(f'v_sub_f32 v{Q + j - 1}, v{X + j}, v{X + 9 - j}')
    RE, IM = CA, CA + 5
    a(f'v_add_f32 v{RE}, v{X}, v{P}')
    for j in range(2, 5):
        a(f'v_add_f32 v{RE}, v{RE}, v{P + j - 1}')
    for k1 in range(1, 5):
        for j in range(1, 5):
            src = X if j == 1 else RE + k1
            a(f'v_fmamk_f32 v{RE + k1}, v{P + j - 1}, {f32(C9[(j * k1) % 9])}, v{src}')
        first = True
        for j in range(1, 5):
            sv = -S9[(j * k1) % 9]
            if abs(sv) < 1e-9:
                continue
            if first:
                a(f'v_mul_f32 v{IM + k1 - 1}, {f32(sv)}, v{Q + j - 1}')
                first = False
            else:
                a(f'v_fmamk_f32 v{IM + k1 - 1}, v{Q + j - 1}, {f32(sv)}, v{IM + k1 - 1}')
    a(f'v_cvt_pk_bf16_f32 v{X}, v{RE}, 0')
    for k1 in range(1, 5):
        c, s = TW + 2 * (k1 - 1), TW + 2 * (k1 - 1) + 1
        r, i = RE + k1, IM + k1 - 1
        a(f'v_mul_f32 v{T}, v{r}, v{c}')
        a(f'v_mul_f32 v{T + 1}, v{i}, v{c}')
        a(f'v_fmac_f32 v{T}, v{i}, v{s}')
        a(f'v_fma_f32 v{T + 1}, -v{r}, v{s}, v{T + 1}')
        a(f'v_cvt_pk_bf16_f32 v{X + k1}, v{T}, v{T + 1}')
    for k1 in range(5):
        a(f'ds_write_b32 v100, v{X + k1} offset:{8 * k1 * P1_STRIDE}')
    a('s_lshr_b32 s34, s26, 4')
    a('s_lshl_b32 s34, s34, 2')
    a('s_lshr_b32 s35, s27, 2')
    a('s_add_u32 s34, s34, s35')
    a('s_lshl_b32 s34, s34, 6')
    a('s_and_b32 s35, s27, 3')
    a('s_lshl_b32 s35, s35, 4')
    a('s_add_u32 s34, s34, s35')
    a('s_and_b32 s35, s26, 15')
    a('s_add_u32 s34, s34, s35')
    a('s_lshl_b32 s34, s34, 4')
    a('s_cmp_lt_u32 s28, 2')
    a('s_cselect_b32 s35, 1, -1')
    a('s_cselect_b32 s36, 0, 576')
    a('s_cselect_b32 s37, 0, 0x80000000')
    for tau in range(2):
        o = 102 + tau
        a(f's_lshl_b32 s38, s29, 3')
        a(f's_add_u32 s38, s38, {4 * tau}')
        a(f'v_add_u32 v104, s38, v6')
        a('v_lshrrev_b32 v105, 1, v104')
        a('v_mad_u32_u24 v106, v7, 9, v105')
        a('v_mul_lo_u32 v106, v106, s35')
        a('v_add_u32 v106, s36, v106')
        a('v_and_b32 v107, 1, v104')
        a(f'v_lshlrev_b32 v{o}, 13, v106')
        a(f'v_lshl_add_u32 v{o}, v107, 4, v{o}')
        a('v_cmp_lt_u32 vcc, 9, v104')
        a('v_cmp_eq_u32 s[40:41], 0, v105')
        a('v_cmp_lt_u32 s[42:43], 32, v7')
        a('s_and_b64 s[40:41], s[40:41], s[42:43]')
        a('s_or_b64 vcc, vcc, s[40:41]')
        a('v_mov_b32 v107, 0x7f000000')
        a(f'v_cndmask_b32 v{o}, v{o}, v107, vcc')
    k.stamp_mid(1)
    k.stamp_clk(4)
    a('s_waitcnt lgkmcnt(0)')
    a('s_barrier')
    k.stamp_mid(2)
    AF = 8
    ACC = 108
    for ks in range(4):
        a(f'ds_read_b128 v[{AF + 4 * ks}:{AF + 4 * ks + 3}], v101 offset:{64 * ks}')
    a('s_cmp_eq_u32 s29, 1')
    a('s_cbranch_scc1 p1_one')
    for ks in range(4):
        a(f'ds_read_b128 v[{AF + 16 + 4 * ks}:{AF + 16 + 4 * ks + 3}], v101 offset:{16 * P1_STRIDE + 64 * ks}')
    for ks in range(4):
        a(f's_waitcnt lgkmcnt({3 - ks})')
        for h, FB in enumerate((FRE, FIM)):
            acc = ACC + 8 + 4 * h
            c = '0' if ks == 0 else f'v[{acc}:{acc + 3}]'
            a(f'v_mfma_f32_16x16x32_bf16 v[{acc}:{acc + 3}], v[{AF + 16 + 4 * ks}:{AF + 16 + 4 * ks + 3}], '
              f'v[{FB + 4 * ks}:{FB + 4 * ks + 3}], {c}')
    a.label('p1_one')
    a('s_waitcnt lgkmcnt(0)')
    for ks in range(4):
        for h, FB in enumerate((FRE, FIM)):
            acc = ACC + 4 * h
            c = '0' if ks == 0 else f'v[{acc}:{acc + 3}]'
            a(f'v_mfma_f32_16x16x32_bf16 v[{acc}:{acc + 3}], v[{AF + 4 * ks}:{AF + 4 * ks + 3}], '
              f'v[{FB + 4 * ks}:{FB + 4 * ks + 3}], {c}')
    a('s_cmp_eq_u32 s29, 1')
    a('s_cbranch_scc1 p1_one2')
    for i in range(4):
        a(f'v_cvt_pk_bf16_f32 v{T + 4 + i}, v{ACC + 8 + i}, v{ACC + 12 + i}')
        a(f'v_xor_b32 v{T + 4 + i}, s37, v{T + 4 + i}')
    a(f'buffer_store_dwordx4 v[{T + 4}:{T + 7}], v103, s[16:19], s34 offen' + pol('p_st'))
    a.label('p1_one2')
    for i in range(4):
        a(f'v_cvt_pk_bf16_f32 v{T + i}, v{ACC + i}, v{ACC + 4 + i}')
        a(f'v_xor_b32 v{T + i}, s37, v{T + i}')
    a(f'buffer_store_dwordx4 v[{T}:{T + 3}], v102, s[16:19], s34 offen' + pol('p_st'))
    k.stamp_end(5)
    a.label('p1_done')
    a('s_endpgm')
    return k


P2_STRIDE = 272


def cmul(a, r, i, c, s, t, conj_tw, neg_im_out=False):
    a(f'v_mul_f32 v{t}, v{r}, v{c}')
    if not neg_im_out:
        a(f'v_mul_f32 v{t + 1}, v{i}, v{c}')
        if conj_tw:
            a(f'v_fmac_f32 v{t}, v{i}, v{s}')
            a(f'v_fma_f32 v{t + 1}, -v{r}, v{s}, v{t + 1}')
        else:
            a(f'v_fma_f32 v{t}, -v{i}, v{s}, v{t}')
            a(f'v_fmac_f32 v{t + 1}, v{r}, v{s}')
    else:
        a(f'v_mul_f32 v{t + 1}, -v{i}, v{c}')
        if conj_tw:
            a(f'v_fmac_f32 v{t}, v{i}, v{s}')
            a(f'v_fmac_f32 v{t + 1}, v{r}, v{s}')
        else:
            a(f'v_fma_f32 v{t}, -v{i}, v{s}, v{t}')
            a(f'v_fma_f32 v{t + 1}, -v{r}, v{s}, v{t + 1}')


def build_p2(stamp=None):
    k = Kernel('p2_kernel', NCOL, 256, 32 * P2_STRIDE, 176, stamp_id=stamp)
    a = k.a
    k.stamp_begin()
    a(f's_cmp_ge_u32 s2, {NCOL}')
    a('s_cbranch_scc1 p2_done')
    a(f's_load_dwordx2 s[4:5], s[0:1], {K_WS}')
    AF = 8
    WV = 40
    FRE, FIM = 48, 64
    GRE, GIM = 80, 96
    TW = 112
    ACC = 128
    BF = 144
    T = 152
    a('v_and_b32 v1, 63, v0')
    a('v_lshrrev_b32 v2, 6, v0')
    a('v_readfirstlane_b32 s3, v2')
    a('v_lshlrev_b32 v3, 4, v1')
    a('s_lshl_b32 s24, s2, 13')
    a('s_add_u32 s25, s24, 4096')
    a('s_lshl_b32 s26, s3, 11')
    a('s_add_u32 s26, s26, s24')
    a('s_mov_b32 s32, 0xffff0000')
    a('s_waitcnt lgkmcnt(0)')
    srd(a, 8, 4, WS_HB, SZ_COL)
    srd(a, 12, 4, WS_WT, SZ_COL)
    srd(a, 16, 4, WS_ZB, SZ_COL)
    for f in range(8):
        a(f'buffer_load_dwordx4 v[{AF + 4 * f}:{AF + 4 * f + 3}], v3, s[8:11], s{24 + f // 4} offen offset:{1024 * (f % 4)}' + pol('p_ld'))
    for et in range(2):
        a(f'buffer_load_dwordx4 v[{WV + 4 * et}:{WV + 4 * et + 3}], v3, s[12:15], s26 offen offset:{1024 * et}' + pol('p_ld'))
    a('v_and_b32 v5, 15, v1')
    a('v_lshrrev_b32 v6, 4, v1')
    a('s_lshl_b32 s33, s3, 4')
    a('v_add_u32 v7, s33, v5')
    NF, G4F, BA = T + 12, T + 13, T + 14
    a(f'v_cvt_f32_u32 v{NF}, v7')
    a(f'v_cvt_f32_u32 v{G4F}, v6')
    a(f'v_mul_f32 v{BA}, v{G4F}, v{NF}')
    a(f'v_mul_f32 v{BA}, {f32(4 / 64.0)}, v{BA}')
    gen_f64_interleaved(a, NF, BA, FRE, FIM, T)
    a(f'v_mul_f32 v{BA}, {f32(64 / 2048.0)}, v{BA}')
    for bt in range(2):
        for i in range(4):
            a(f'v_fmamk_f32 v{T + i}, v{NF}, {f32((16 * bt + i) / 2048.0)}, v{BA}')
        for i in range(4):
            a(f'v_cos_f32 v{TW + 2 * (bt * 4 + i)}, v{T + i}')
            a(f'v_sin_f32 v{TW + 2 * (bt * 4 + i) + 1}, v{T + i}')
    for et in range(2):
        a(f'v_add_u32 v{NF}, {16 * et}, v5')
        a(f'v_cvt_f32_u32 v{NF}, v{NF}')
        a(f'v_mul_f32 v{BA}, v{G4F}, v{NF}')
        a(f'v_mul_f32 v{BA}, {f32(4 / 32.0)}, v{BA}')
        gen_planar(a, NF, BA, 32, 2, GRE + 8 * et, GIM + 8 * et, T, lambda ks: (1, -1, 1))
    a(f'v_mul_u32_u24 v4, {4 * P2_STRIDE}, v6')
    a('v_lshl_add_u32 v4, v7, 2, v4')
    a(f'v_mul_u32_u24 v2, {P2_STRIDE}, v5')
    a('v_lshl_add_u32 v2, v6, 4, v2')
    a('v_lshlrev_b32 v1, 7, v7')
    a('v_lshl_add_u32 v1, v6, 4, v1')

    def stage64():
        for ks in range(4):
            for bt in range(2):
                for h, FB in enumerate((FRE, FIM)):
                    acc = ACC + 8 * bt + 4 * h
                    c = '0' if ks == 0 else f'v[{acc}:{acc + 3}]'
                    af = AF + 4 * (bt * 4 + ks)
                    a(f'v_mfma_f32_16x16x32_bf16 v[{acc}:{acc + 3}], v[{af}:{af + 3}], '
                      f'v[{FB + 4 * ks}:{FB + 4 * ks + 3}], {c}')

    def stage32():
        for kb in range(2):
            for mt in range(2):
                for h, GB in enumerate((GRE, GIM)):
                    acc = ACC + 8 * mt + 4 * h
                    c = '0' if kb == 0 else f'v[{acc}:{acc + 3}]'
                    g = GB + 4 * (mt * 2 + kb)
                    a(f'v_mfma_f32_16x16x32_bf16 v[{acc}:{acc + 3}], v[{g}:{g + 3}], '
                      f'v[{BF + 4 * kb}:{BF + 4 * kb + 3}], {c}')

    def pack_planar(tl):
        b = BF + 4 * tl
        a(f'v_cvt_pk_bf16_f32 v{b}, v{T}, v{T + 2}')
        a(f'v_cvt_pk_bf16_f32 v{b + 1}, v{T + 4}, v{T + 6}')
        a(f'v_cvt_pk_bf16_f32 v{b + 2}, v{T + 1}, v{T + 3}')
        a(f'v_cvt_pk_bf16_f32 v{b + 3}, v{T + 5}, v{T + 7}')

    k.stamp_mid(0)
    a('s_waitcnt vmcnt(2)')
    k.stamp_mid(1)
    stage64()
    for bt in range(2):
        for i in range(4):
            tw = TW + 2 * (bt * 4 + i)
            cmul(a, ACC + 8 * bt + i, ACC + 8 * bt + 4 + i, tw, tw + 1, T + 2 * i, True)
        pack_planar(bt)
    stage32()
    a('s_waitcnt vmcnt(0)')
    a('v_and_b32 v1, 63, v0')
    pf_hook(a, 'a2', 36, 4, T + 10, 168, 48)
    a('v_lshlrev_b32 v1, 7, v7')
    a('v_lshl_add_u32 v1, v6, 4, v1')
    for et in range(2):
        for i in range(4):
            w = WV + 4 * et + i
            a(f'v_lshlrev_b32 v{T + 8}, 16, v{w}')
            a(f'v_and_b32 v{T + 9}, s32, v{w}')
            cmul(a, ACC + 8 * et + i, ACC + 8 * et + 4 + i, T + 8, T + 9, T + 2 * i, False, neg_im_out=True)
        pack_planar(et)
    stage32()
    for bt in range(2):
        for i in range(4):
            tw = TW + 2 * (bt * 4 + i)
            t = T + 2 * (i % 2)
            cmul(a, ACC + 8 * bt + i, ACC + 8 * bt + 4 + i, tw, tw + 1, t, True)
            a(f'v_cvt_pk_bf16_f32 v{T + 4 + i}, v{t}, v{t + 1}')
            a(f'ds_write_b32 v4, v{T + 4 + i} offset:{(16 * bt + i) * P2_STRIDE}')
    a('s_waitcnt lgkmcnt(0)')
    a('s_barrier')
    k.stamp_mid(2)
    for ks in range(4):
        for bt in range(2):
            af = AF + 4 * (bt * 4 + ks)
            a(f'ds_read_b128 v[{af}:{af + 3}], v2 offset:{16 * bt * P2_STRIDE + 64 * ks}')
    a('s_waitcnt lgkmcnt(0)')
    stage64()
    for bt in range(2):
        acc = ACC + 8 * bt
        o = T + 4 * bt
        a(f'v_cvt_pk_bf16_f32 v{o}, v{acc}, v{acc + 1}')
        a(f'v_cvt_pk_bf16_f32 v{o + 1}, v{acc + 2}, v{acc + 3}')
        a(f'v_cvt_pk_bf16_f32 v{o + 2}, v{acc + 4}, v{acc + 5}')
        a(f'v_cvt_pk_bf16_f32 v{o + 3}, v{acc + 6}, v{acc + 7}')
        a(f'buffer_store_dwordx4 v[{o}:{o + 3}], v1, s[16:19], s24 offen offset:{64 * bt}' + pol('p_st'))
    k.stamp_end(3)
    a.label('p2_done')
    a('s_endpgm')
    return k


P3_PLANE = 360 * 8
P3_STAT = 4 * P3_PLANE


def build_p3(stamp=None):
    k = Kernel('p3_kernel', 256, 512, P3_STAT + 512, 136, stamp_id=stamp)
    a = k.a
    k.stamp_begin()
    a('s_cmp_ge_u32 s2, 256')
    a('s_cbranch_scc1 p3_done')
    a(f's_load_dwordx2 s[4:5], s[0:1], {K_WS}')
    a(f's_load_dwordx2 s[6:7], s[0:1], {K_X}')
    X = 8
    GA, SB, CB = 17, 26, 35
    ZV = 44
    FRE, FIM = 52, 68
    TW = 84
    T = 92
    ACC = 108
    AFR = 44
    a('v_and_b32 v1, 63, v0')
    a('v_lshrrev_b32 v2, 6, v0')
    a('v_readfirstlane_b32 s3, v2')
    a('s_and_b32 s24, s2, 7')
    a('s_lshr_b32 s25, s2, 3')
    a('s_and_b32 s26, s25, 3')
    a('s_lshr_b32 s25, s25, 2')
    a('s_lshl_b32 s25, s25, 3')
    a('s_add_u32 s24, s24, s25')
    a('s_lshl_b32 s24, s24, 2')
    a('s_add_u32 s24, s24, s26')
    a('s_and_b32 s28, s3, 3')
    a('s_lshr_b32 s29, s3, 2')
    a('v_and_b32 v5, 15, v1')
    a('v_lshrrev_b32 v6, 4, v1')
    a('s_lshl_b32 s33, s28, 4')
    a('v_add_u32 v7, s33, v5')
    a('v_and_b32 v2, 1, v1')
    a('v_lshrrev_b32 v3, 1, v1')
    a('s_and_b32 s34, s3, 1')
    a('s_lshl_b32 s35, s34, 5')
    a('v_add_u32 v3, s35, v3')
    a('s_cmp_eq_u32 s34, 0')
    a('s_cselect_b32 s35, 1, -1')
    a('s_cselect_b32 s36, 0, 576')
    a('s_lshr_b32 s37, s3, 1')
    a(f'v_mad_u32_u24 v{T}, v3, 9, s37')
    a(f'v_mul_lo_u32 v{T}, v{T}, s35')
    a(f'v_add_u32 v{T}, s36, v{T}')
    a(f'v_lshlrev_b32 v{T}, 13, v{T}')
    a(f'v_lshl_add_u32 v{T}, v2, 4, v{T}')
    a('s_lshl_b32 s38, s24, 5')
    a('s_lshl_b32 s39, s35, 15')
    a(f'v_add_u32 v{T + 1}, s39, v{T}')
    a(f'v_mul_u32_u24 v{T + 2}, {2 * P3_PLANE}, v2')
    a(f'v_lshl_add_u32 v{T + 2}, v3, 3, v{T + 2}')
    a('s_mul_i32 s39, s37, 576')
    a(f'v_add_u32 v{T + 2}, s39, v{T + 2}')
    a('v_mul_u32_u24 v3, 1152, v6')
    a('v_lshl_add_u32 v3, v7, 1, v3')
    a('s_lshl_b32 s30, s24, 1')
    a('s_add_u32 s30, s30, s29')
    a('s_mul_i32 s30, s30, 4608')
    a('v_lshlrev_b32 v4, 2, v7')
    for i in range(9):
        a(f'v_mov_b32 v{X + i}, 0')
    a('s_movk_i32 s40, 4608')
    a('s_movk_i32 s41, 6912')
    a('s_movk_i32 s42, 9216')
    a('s_mov_b32 s32, 0xffff0000')
    a('s_waitcnt lgkmcnt(0)')
    srd(a, 8, 6, 0, SZ_X)
    srd(a, 12, 4, WS_MOD, SZ_MOD)
    srd(a, 16, 4, WS_ZB, SZ_COL)
    srd(a, 20, 4, WS_X1, SZ_X)
    srd(a, 44, 4, WS_H2, SZ_X)
    a(f'buffer_load_dwordx4 v[{ZV}:{ZV + 3}], v{T}, s[16:19], s38 offen' + pol('p_ld'))
    a('s_cmp_lt_u32 s3, 2')
    a('s_cbranch_scc0 p3_noz2')
    a(f'buffer_load_dwordx4 v[{ZV + 4}:{ZV + 7}], v{T + 1}, s[16:19], s38 offen' + pol('p_ld'))
    a.label('p3_noz2')
    for i in range(9):
        a(f'buffer_load_short_d16_hi v{X + i}, v3, s[8:11], s30 offen offset:{128 * i}' + pol('p_in'))
    for base, sreg in ((GA, 40), (CB, 42), (SB, 41)):
        for i in range(9):
            a(f'buffer_load_dword v{base + i}, v4, s[12:15], s{sreg} offen offset:{256 * i}')
    a(f'v_mov_b32 v2, v{T + 2}')
    NF, BA = 120, 121
    a(f'v_cvt_f32_u32 v{NF}, v7')
    a(f'v_cvt_f32_u32 v{BA}, v6')
    a(f'v_mul_f32 v{BA}, v{BA}, v{NF}')
    a(f'v_mul_f32 v{BA}, {f32(4 / 64.0)}, v{BA}')
    gen_planar(a, NF, BA, 64, 4, FRE, FIM, T, lambda ks: (1, 1, -1) if ks < 2 else (-1, 1, 1))
    SCALE = 1.0 / (S * D)
    for k1 in range(1, 5):
        a(f'v_mul_f32 v{T + k1}, {f32(k1 / 576.0)}, v{NF}')
    for k1 in range(1, 5):
        a(f'v_cos_f32 v{TW + 2 * (k1 - 1)}, v{T + k1}')
        a(f'v_sin_f32 v{TW + 2 * (k1 - 1) + 1}, v{T + k1}')
    for r in range(8):
        a(f'v_mul_f32 v{TW + r}, {f32(2 * SCALE)}, v{TW + r}')
    a(f'v_lshrrev_b32 v{T}, 2, v5')
    a(f'v_lshl_add_u32 v{T}, v6, 2, v{T}')
    a(f'v_lshlrev_b32 v{T}, 3, v{T}')
    a(f's_mul_i32 s39, s29, {2 * P3_PLANE}')
    a(f'v_add_u32 v122, s39, v{T}')
    a(f'v_and_b32 v{T}, 3, v1')
    a(f'v_add_u32 v{T}, 1, v{T}')
    a(f'v_mul_u32_u24 v123, 72, v{T}')
    a('v_lshl_add_u32 v123, v123, 3, v122')
    NT = 0
    if OPT.get('pf1'):
        NT = touch_w1(a, 3, T, 128, 52)
    a(f's_waitcnt vmcnt({36 + NT})')
    k.stamp_mid(0)
    k.stamp_clk(3)
    a(f'ds_write_b64 v2, v[{ZV}:{ZV + 1}]')
    a(f'ds_write_b64 v2, v[{ZV + 2}:{ZV + 3}] offset:{P3_PLANE}')
    a('s_cmp_lt_u32 s3, 2')
    a('s_cbranch_scc0 p3_noz3')
    a(f'ds_write_b64 v2, v[{ZV + 4}:{ZV + 5}] offset:{4 * 576}')
    a(f'ds_write_b64 v2, v[{ZV + 6}:{ZV + 7}] offset:{4 * 576 + P3_PLANE}')
    a.label('p3_noz3')
    a('s_waitcnt lgkmcnt(0)')
    a('s_barrier')
    if OPT.get('a3l'):
        a('s_waitcnt vmcnt(0)')
        pf_hook(a, 'a3', 32, 8, 124, 128, 52)
        NT = 40
    K0 = [44, 48, 124, 44]
    for ks in range(4):
        for h in range(2):
            a(f'ds_read_b64_tr_b16 v[{T + 4 * ks + 2 * h}:{T + 4 * ks + 2 * h + 1}], v123 offset:{h * P3_PLANE + 128 * ks}')
    for ks in range(3):
        for h in range(2):
            a(f'ds_read_b64_tr_b16 v[{K0[ks] + 2 * h}:{K0[ks] + 2 * h + 1}], v122 offset:{h * P3_PLANE + 128 * ks}')
    for ks in range(4):
        a(f's_waitcnt lgkmcnt({12 - 2 * ks})')
        for h, FB in enumerate((FRE, FIM)):
            acc = ACC + 4 * h
            c = '0' if ks == 0 else f'v[{acc}:{acc + 3}]'
            a(f'v_mfma_f32_16x16x32_bf16 v[{acc}:{acc + 3}], v[{T + 4 * ks}:{T + 4 * ks + 3}], '
              f'v[{FB + 4 * ks}:{FB + 4 * ks + 3}], {c}')
    acc = ACC + 8
    a('s_waitcnt lgkmcnt(4)')
    a(f'v_mfma_f32_16x16x32_bf16 v[{acc}:{acc + 3}], v[{K0[0]}:{K0[0] + 3}], v[{FRE}:{FRE + 3}], 0')
    for h in range(2):
        a(f'ds_read_b64_tr_b16 v[{T + 2 * h}:{T + 2 * h + 1}], v122 offset:{h * P3_PLANE + 128 * 3}')
    a('s_waitcnt lgkmcnt(2)')
    for ks in (1, 2):
        a(f'v_mfma_f32_16x16x32_bf16 v[{acc}:{acc + 3}], v[{K0[ks]}:{K0[ks] + 3}], '
          f'v[{FRE + 4 * ks}:{FRE + 4 * ks + 3}], v[{acc}:{acc + 3}]')
    a('s_waitcnt lgkmcnt(0)')
    a(f'v_mfma_f32_16x16x32_bf16 v[{acc}:{acc + 3}], v[{T}:{T + 3}], v[{FRE + 12}:{FRE + 15}], v[{acc}:{acc + 3}]')
    for h in range(2):
        r = ACC + 4 * h
        a(f'v_permlane32_swap_b32 v{r}, v{r + 2}')
        a(f'v_permlane32_swap_b32 v{r + 1}, v{r + 3}')
    for h in range(2):
        r = ACC + 4 * h
        a(f'v_permlane16_swap_b32 v{r}, v{r + 1}')
        a(f'v_permlane16_swap_b32 v{r + 2}, v{r + 3}')
    for k1 in range(1, 5):
        cmul(a, ACC + k1 - 1, ACC + 4 + k1 - 1, TW + 2 * (k1 - 1), TW + 2 * (k1 - 1) + 1, T + 2 * (k1 - 1), False)
    T0 = T + 8
    a('v_cmp_eq_u32 vcc, 1, v6')
    a(f'v_cndmask_b32 v{T0}, v{acc}, v{acc + 1}, vcc')
    a('v_cmp_eq_u32 vcc, 2, v6')
    a(f'v_cndmask_b32 v{T0}, v{T0}, v{acc + 2}, vcc')
    a('v_cmp_eq_u32 vcc, 3, v6')
    a(f'v_cndmask_b32 v{T0}, v{T0}, v{acc + 3}, vcc')
    a(f'v_mul_f32 v{T0}, {f32(SCALE)}, v{T0}')
    Y = FRE
    PP, QQ = FIM, FIM + 4
    a(f'v_add_f32 v{Y}, v{T0}, v{T}')
    for k1 in range(2, 5):
        a(f'v_add_f32 v{Y}, v{Y}, v{T + 2 * (k1 - 1)}')
    for n in range(1, 5):
        for k1 in range(1, 5):
            src = T0 if k1 == 1 else PP + n - 1
            a(f'v_fmamk_f32 v{PP + n - 1}, v{T + 2 * (k1 - 1)}, {f32(C9[(n * k1) % 9])}, v{src}')
        first = True
        for k1 in range(1, 5):
            sv = S9[(n * k1) % 9]
            if abs(sv) < 1e-9:
                continue
            if first:
                a(f'v_mul_f32 v{QQ + n - 1}, {f32(sv)}, v{T + 2 * (k1 - 1) + 1}')
                first = False
            else:
                a(f'v_fmamk_f32 v{QQ + n - 1}, v{T + 2 * (k1 - 1) + 1}, {f32(sv)}, v{QQ + n - 1}')
    for n in range(1, 5):
        a(f'v_sub_f32 v{Y + n}, v{PP + n - 1}, v{QQ + n - 1}')
        a(f'v_add_f32 v{Y + 9 - n}, v{PP + n - 1}, v{QQ + n - 1}')
    ys = [Y + i for i in range(9)]
    xs = [X + i for i in range(9)]
    round_list(a, ys, T, 32)
    a(f's_waitcnt vmcnt({18 + NT})')
    for i in range(9):
        a(f'v_mul_f32 v{Y + i}, v{Y + i}, v{GA + i}')
    round_list(a, ys, T, 32)
    for i in range(9):
        a(f'v_add_f32 v{X + i}, v{X + i}, v{Y + i}')
    round_list(a, xs, T, 32)
    for i in range(9):
        a(f'buffer_store_short_d16_hi v{X + i}, v3, s[20:23], s30 offen offset:{128 * i}' + pol('p_st2'))
    a('s_lshl_b32 s39, s29, 7')
    a(f's_add_u32 s39, s39, {P3_STAT}')
    a('v_lshl_add_u32 v122, v6, 5, s39')
    a('s_lshl_b32 s39, s28, 3')
    a('v_add_u32 v123, s39, v122')
    a('v_cmp_eq_u32 s[48:49], 0, v5')

    def ln(off):
        M, V = T + 8, T + 9
        a(f'v_add_f32 v{M}, v{X}, v{X + 1}')
        for i in range(2, 9):
            a(f'v_add_f32 v{M}, v{M}, v{X + i}')
        row16_sum(a, [M])
        a(f'v_mul_f32 v{T + 10}, {f32(1 / 144.0)}, v{M}')
        a(f'v_sub_f32 v{T}, v{X}, v{T + 10}')
        a(f'v_mul_f32 v{V}, v{T}, v{T}')
        for i in range(1, 9):
            a(f'v_sub_f32 v{T + i % 2}, v{X + i}, v{T + 10}')
            a(f'v_fmac_f32 v{V}, v{T + i % 2}, v{T + i % 2}')
        row16_sum(a, [V])
        a('s_mov_b64 exec, s[48:49]')
        a(f'ds_write_b64 v123, v[{M}:{V}] offset:{off}')
        a('s_mov_b64 exec, -1')
        a('s_waitcnt lgkmcnt(0)')
        a('s_barrier')
        a(f'ds_read_b128 v[{T}:{T + 3}], v122 offset:{off}')
        a(f'ds_read_b128 v[{T + 4}:{T + 7}], v122 offset:{off + 16}')
        a('s_waitcnt lgkmcnt(0)')
        a(f'v_add_f32 v{M}, v{T}, v{T + 2}')
        a(f'v_add_f32 v{T + 10}, v{T + 4}, v{T + 6}')
        a(f'v_add_f32 v{V}, v{T + 1}, v{T + 3}')
        a(f'v_add_f32 v{T + 11}, v{T + 5}, v{T + 7}')
        a(f'v_add_f32 v{M}, v{M}, v{T + 10}')
        a(f'v_add_f32 v{V}, v{V}, v{T + 11}')
        a(f'v_mul_f32 v{M}, {f32(1 / 576.0)}, v{M}')
        a(f'v_mul_f32 v{T + 10}, {f32(144.0)}, v{M}')
        a(f'v_sub_f32 v{T}, v{T}, v{T + 10}')
        a(f'v_mul_f32 v{T + 11}, v{T}, v{T}')
        for w in range(1, 4):
            a(f'v_sub_f32 v{T + 2 * w}, v{T + 2 * w}, v{T + 10}')
            a(f'v_fmac_f32 v{T + 11}, v{T + 2 * w}, v{T + 2 * w}')
        a(f'v_fmamk_f32 v{V}, v{T + 11}, {f32(1 / 144.0)}, v{V}')
        a(f'v_mul_f32 v{V}, {f32(1 / 576.0)}, v{V}')
        ln_finish(a, M, V, T, 32)
        ln_apply(a, xs, M, V, T, 32)

    k.stamp_mid(1)
    k.stamp_clk(4)
    ln(0)
    k.stamp_mid(2)
    a(f's_waitcnt vmcnt({min(63, 9 + NT)})')
    modulate(a, xs, CB, SB, T, 32)
    ln(256)
    a(f'v_mov_b32 v{X + 9}, 0')
    for m in range(5):
        a(f'v_permlane16_swap_b32 v{X + 2 * m}, v{X + 2 * m + 1}')
    PK = T
    for m in range(5):
        a(f'v_cvt_pk_bf16_f32 v{PK + m}, v{X + 2 * m}, v{X + 2 * m + 1}')
    a(f'v_mov_b32 v{PK + 5}, 0')
    for m in range(0, 6, 2):
        a(f'v_permlane32_swap_b32 v{PK + m}, v{PK + m + 1}')
    a('s_mul_i32 s39, s24, 1536')
    a('s_lshl_b32 s43, s29, 3')
    a('s_add_u32 s39, s39, s43')
    a(f's_mov_b32 s43, {393216 - 1536}')
    for mm in range(3):
        dd = T + 8
        a(f'v_lshl_add_u32 v{dd}, v6, 6, v7')
        a(f'v_add_u32 v{dd}, {256 * mm}, v{dd}')
        a(f'v_mul_u32_u24 v{dd + 1}, 683, v{dd}')
        a(f'v_lshrrev_b32 v{dd + 1}, 16, v{dd + 1}')
        a(f'v_mul_lo_u32 v{dd + 1}, v{dd + 1}, s43')
        a(f'v_lshl_add_u32 v{dd + 2 + mm}, v{dd}, 4, v{dd + 1}')
        a(f'buffer_store_dwordx2 v[{PK + 2 * mm}:{PK + 2 * mm + 1}], v{dd + 2 + mm}, s[44:47], s39 offen' + pol('p_st2'))
    k.stamp_end(5)
    a.label('p3_done')
    a('s_endpgm')
    return k
```

```python
from common import *
import k_tail
from k_fft import gen_f64_interleaved, gen_planar, C9, S9, EPS

PITCH = 10240
CR_PLANE, MR_PLANE = 4608, 9216
WS_CR = WS_MODP
WS_PF = WS_CR + 3 * CR_PLANE
WS_MR = WS_MODP + 24576
POI0, NPOI, NLEAD, LEAD0 = 118, 136, 2, 254
NCRIT, NTASK, TASK0 = 54, 162, 64
POI_N = 20
WTC = OPT.get('wtc', 0)
WT_PITCH = 289 * 128
WT_STEP = 8192 if WTC else 64 * 8192
TP = OPT.get('tagp', 0)
if TP:
    CR_PLANE = 9216
    WS_PF = WS_CR + 3 * CR_PLANE
    WS_MR = WS_MODP + 40960
    POI0, NPOI, POI_W = 176, 80, 4
    TASK0 = OPT.get('task0', 0)
    LEAD0 = 113 if OPT.get('xcrit') else TASK0 + NCRIT
    WT_PITCH, WT_BLK = 9344, 1280
    assert TASK0 + NTASK <= POI0 or TASK0 == 33
    assert WS_PF + NPOI * 64 <= WS_MR and WS_MR + 3 * MR_PLANE <= WS_FLG
XROW = 1184
WT_BLK = 5120
POLL_MAX = 30000
T1S = 272
P3_PLANE = 360 * 8
L_SC = 0
L_GR = 4608
L_MR = 6656
L_T1 = L_MR + 8192
L_A2 = L_T1 + 48 * T1S
L_G2 = L_A2 + 16384
L_Z3 = L_G2 + 2 * 32 * T1S
L_ST = L_Z3 + 4 * P3_PLANE
L_X1 = L_ST + 512
L_X3 = L_X1 + 8 * XROW
L_END = L_X3 + 8 * XROW
L_WT = L_A2
if OPT.get('nw1', 5) == 6:
    L_X3, L_SC, L_GR = 0, 0, 4608
    L_MR = 9728
    L_Z3 = L_MR + 8192
    L_ST = L_Z3 + 4 * P3_PLANE
    L_A2 = L_ST + 512
    L_G2 = L_A2 + 16384
    L_END = L_G2 + 2 * 32 * T1S
    L_X1 = L_T1 = L_MR
    L_WT = L_X1 + 8 * XROW
    assert L_WT + 8 * WT_BLK <= 65536 and L_END <= 65536 and L_WT % 16 == 0
    if TP:
        L_WT = 65536
assert L_A2 % 16 == 0 and L_G2 % 16 == 0 and L_Z3 % 16 == 0 and L_ST % 16 == 0 and L_MR % 16 == 0

SX, SWR, SWI, SC_, SWM, SDB, SWS, SW1 = 4, 8, 12, 16, 20, 24, 28, 32
sq = lambda b: f's[{b}:{b + 3}]'

X1, X3 = 8, 18
WL, CV, WM, GACC, T0_, MS = 28, 44, 48, 60, 68, 84
FRE, FIM, GRE, GIM, TW2C, TW2S, TW1, F3RE, F3IM, TW3C, TW3S = 128, 144, 160, 176, 192, 200, 208, 216, 232, 248, 252
(A_T1W, A_T1R, A_HB0, A_HB1, A_P2LD, A_L16, A_GW, A_GR, A_ZST, A_ZLD0, A_ZLD1, A_ZW, A_TRM, A_TR0, A_X3, A_STR, A_STW,
 A_H2A, A_H2B, A_H2C, A_N4, A_L4, A_MR, A_WT) = range(104, 128)


class VM:
    def __init__(self, a):
        self.a, self.q = a, []

    def __call__(self, tag, text, cond=False):
        self.a(text)
        self.q.append((tag, cond))

    def wait(self, tag):
        idx = max(i for i, (t, _) in enumerate(self.q) if t == tag)
        n = sum(1 for t, c in self.q[idx + 1:] if not c)
        self.a(f's_waitcnt vmcnt({min(n, 63)})')


def pk(a, op, d, x, y, z=None, neg=None):
    r = lambda b: f'v[{b}:{b + 1}]'
    m = ''
    if neg is not None:
        n = 3 if z is not None else 2
        lst = ','.join('1' if i == neg else '0' for i in range(n))
        m = f' neg_lo:[{lst}] neg_hi:[{lst}]'
    if z is None:
        a(f'v_pk_{op}_f32 {r(d)}, {r(x)}, {r(y)}{m}')
    else:
        a(f'v_pk_{op}_f32 {r(d)}, {r(x)}, {r(y)}, {r(z)}{m}')


def cmul4(a, re, im, c, s, tr, ti, mode):
    for h in (0, 2):
        pk(a, 'mul', tr + h, re + h, c + h)
        pk(a, 'mul', ti + h, im + h, c + h, neg=0 if mode == 'mulc' else None)
    for h in (0, 2):
        pk(a, 'fma', tr + h, im + h, s + h, tr + h, neg=None if mode == 'conj' else 0)
        pk(a, 'fma', ti + h, re + h, s + h, ti + h, neg=None if mode == 'mul' else 0)


def poll(a, name, loads, regs, tmp, scnt, sleep=0, plain=0):
    a(f's_mov_b32 s{scnt}, 0')
    if plain:
        for l in loads:
            a(l.replace(' sc1', ''))
        a(f's_branch {name}_chk')
    a.label(name)
    for l in loads:
        a(l)
    a.label(name + '_chk')
    a(f's_add_u32 s{scnt}, s{scnt}, 1')
    a('s_waitcnt vmcnt(0)')
    rs = list(regs)
    cur = rs.pop(0)
    while rs:
        if len(rs) >= 2:
            a(f'v_max3_u32 v{tmp}, v{cur}, v{rs[0]}, v{rs[1]}')
            rs = rs[2:]
        else:
            a(f'v_max_u32 v{tmp}, v{cur}, v{rs[0]}')
            rs = rs[1:]
        cur = tmp
    a(f'v_cmp_eq_u32 vcc, -1, v{cur}')
    a('s_and_b64 exec, vcc, vcc')
    a(f's_cbranch_scc0 {name}_ok')
    if sleep:
        a(f's_sleep {sleep}')
    a(f's_cmp_lt_u32 s{scnt}, {POLL_MAX}')
    a(f's_cbranch_scc1 {name}')
    a.label(name + '_ok')
    a('s_mov_b64 exec, -1')


def announce(a, name, scnt, va=60, vd=61, keep=False, line=1):
    if TP:
        a('s_mov_b64 exec, 1')
    else:
        a(f's_mov_b64 exec, {(1 << NLEAD) - 1}')
        a(f'v_lshlrev_b32 v{va}, 7, v1')
    a(f's_mov_b32 s{scnt}, 0')
    a.label(name)
    if TP:
        a(f'buffer_load_dword v{vd}, off, {sq(SDB)}, 0 offset:252 sc1')
    else:
        a(f'buffer_load_dword v{vd}, v{va}, {sq(SDB)}, 0 offen sc1')
    a(f's_add_u32 s{scnt}, s{scnt}, 1')
    a('s_waitcnt vmcnt(0)')
    a(f'v_cmp_eq_u32 vcc, 0, v{vd}')
    a('s_nop 1')
    a(f's_cbranch_vccz {name}_ok')
    a(f's_sleep {OPT.get("ansl", 2)}')
    a(f's_cmp_lt_u32 s{scnt}, {POLL_MAX}')
    a(f's_cbranch_scc1 {name}')
    a.label(name + '_ok')
    if keep:
        a(f'v_readfirstlane_b32 s26, v{vd}')
    a('s_mov_b64 exec, -1')


A_TCH = 17


def touches(a, vm, name, nwaves, sj, vd=8):
    first, last = OPT.get(name + 'f', 0), min(OPT.get(name + 'l', 0), 341)
    n = last - first
    if n <= 0:
        return
    step = 6 * F * 2
    a(f's_add_u32 s58, s{sj}, {first}')
    a(f's_mul_i32 s58, s58, {step}')
    a('s_add_u32 s58, s58, s57')
    reps = (n + nwaves - 1) // nwaves
    for r in range(reps):
        lab = None
        if (r + 1) * nwaves > n:
            lab = a.newlabel('ftch')
            a(f's_cmp_lt_u32 s{sj}, {n - r * nwaves}')
            a(f's_cbranch_scc0 {lab}')
        for sfx in tpair('tp' + name[1]):
            vm('touch', f'buffer_load_dword v{vd}, v{A_TCH}, {sq(SW1)}, s58 offen' + sfx, cond=True)
        if lab:
            a.label(lab)
        else:
            a(f's_add_u32 s58, s58, {nwaves * step}')


def const3(a, T):
    NF, BA = T + 12, T + 13
    a(f'v_cvt_f32_u32 v{NF}, v7')
    a(f'v_cvt_f32_u32 v{BA}, v6')
    a(f'v_mul_f32 v{BA}, v{BA}, v{NF}')
    a(f'v_mul_f32 v{BA}, {f32(4 / 64.0)}, v{BA}')
    gen_planar(a, NF, BA, 64, 4, F3RE, F3IM, T, lambda ks: (1, 1, -1) if ks < 2 else (-1, 1, 1))
    SCALE = 1.0 / (S * D)
    for k1 in range(1, 5):
        a(f'v_mul_f32 v{T + k1}, {f32(k1 / 576.0)}, v{NF}')
    for k1 in range(1, 5):
        a(f'v_cos_f32 v{TW3C + k1 - 1}, v{T + k1}')
        a(f'v_sin_f32 v{TW3S + k1 - 1}, v{T + k1}')
    for r in range(8):
        a(f'v_mul_f32 v{TW3C + r}, {f32(2 * SCALE)}, v{TW3C + r}')


def build_f(stamp=None):
    FZ = OPT.get('fused', 2) == 2
    k = Kernel('f_kernel', 256, 512, 163840 if FZ else max(L_END, 81920 + 1024), 256, sgprs=102, stamp_id=stamp, mid_base=64 if FZ else 60)
    k.sel = ['issue', 'const', 'gemv', 'ln', 'st0', 'st1', 'staged', 'hbst', 'hbok', 'zst', 'zok', 'x1']
    if FZ:
        k.sel = k.sel + ['fend'] if OPT.get('self') else \
            ['hbok', 'zok', 'h2st', 'fend', 'g1go', 'g1end', 'g1out', 'g2go', 'g2end', 'g2rdy', 'c0', 'c1']
    if OPT.get('selg'):
        k.sel = ['issue', 'const', 'gv0', 'gv1', 'gemv', 'ln', 'st1', 'st0' if TP else 'staged', 'p1go', 'hbst', 'hbok', 'zst', 'zok']
    if OPT.get('selx'):
        k.sel = ['fend', 'g1go', 'g1end', 'g1out', 'g2go', 'g2end', 'xst', 'xdr', 'g2rdy', 'xn']
    if OPT.get('selq'):
        k.sel = ['fend', 'g1go', 'q1', 'q2', 'q3', 'q4', 'q5', 'q6', 'g1end', 'g2go', 'c0', 'c1']
    SC1 = ' sc1' if FZ else ''
    TY0, TY3 = OPT.get('ty0', 27), OPT.get('ty3', 27)
    a = k.a
    vm = VM(a)
    k.stw = OPT.get('stw', 0)
    k.stamp_begin()
    a('s_cmp_ge_u32 s2, 256')
    a('s_cbranch_scc1 f_done')
    if OPT.get('prio'):
        a('s_setprio 3')
    if OPT.get('perm'):
        a('s_bfe_u32 s36, s2, 0x30003')
        a('s_and_b32 s37, s2, 7')
        a('s_lshl_b32 s37, s37, 3')
        a('s_andn2_b32 s2, s2, 63')
        a('s_or_b32 s2, s2, s36')
        a('s_or_b32 s2, s2, s37')
    for sb, off in ((SC_, K_C), (SWM, K_WMOD), (SWS, K_WS), (SX, K_X), (SWR, K_WR), (SWI, K_WI), (SDB, K_DBG), (SW1, K_W1)):
        a(f's_load_dwordx2 s[{sb}:{sb + 1}], s[0:1], {off}')
    for sb, sz in ((SC_, D * 2), (SWM, D * 3456 * 2), (SWS, 0x10000000 if OPT.get('rotx') else 0x3000000), (SX, SZ_X), (SWR, S * NCOL * 2), (SWI, S * NCOL * 2),
                   (SDB, 256), (SW1, SZ_W)):
        a(f's_mov_b32 s{sb + 2}, {sz:#x}')
        a(f's_mov_b32 s{sb + 3}, 0x20000')
    a('v_and_b32 v1, 63, v0')
    a('v_lshrrev_b32 v2, 6, v0')
    a('v_readfirstlane_b32 s3, v2')
    a('v_and_b32 v5, 15, v1')
    a('v_lshrrev_b32 v6, 4, v1')
    a('s_and_b32 s36, s2, 7')
    a('s_lshr_b32 s37, s2, 3')
    if OPT.get('cpf'):
        k_tail.code_touch(a, 'cpf', 27, OPT.get('cpfw', 5), 102)
    if OPT.get('slotmap', 1):
        a('s_lshr_b32 s38, s37, 3')
        a('s_sub_u32 s38, 3, s38')
        a('s_lshl_b32 s38, s38, 3')
        a('s_add_u32 s38, s38, s36')
        a('s_lshl_b32 s38, s38, 3')
        a('s_and_b32 s39, s37, 7')
        a('s_add_u32 s38, s38, s39')
    else:
        a('s_lshl_b32 s38, s36, 5')
        a('s_add_u32 s38, s38, s37')
    a('s_and_b32 s39, s3, 3')
    a('s_lshr_b32 s40, s3, 2')
    a(f's_sub_u32 s41, s2, {TASK0}')
    if OPT.get('xcrit'):
        a('s_lshl_b32 s41, s37, 2')
        a('s_and_b32 s43, s36, 3')
        a('s_add_u32 s41, s41, s43')
        a('s_cmp_lt_u32 s36, 4')
        a(f's_cselect_b32 s43, 0, {POI0 // 2}')
        a('s_add_u32 s41, s41, s43')
        a(f's_cmp_ge_u32 s2, {POI0}')
        a('s_cselect_b32 s41, 255, s41')
    elif TP and TASK0 + NTASK > POI0:
        a(f's_cselect_b32 s43, {POI0}, 0')
        a('s_add_u32 s41, s41, s43')
        a(f's_cmp_ge_u32 s2, {POI0}')
        a('s_cselect_b32 s41, 255, s41')
    a('s_mul_i32 s43, s41, 171')
    a('s_lshr_b32 s43, s43, 9')
    a('s_mul_i32 s44, s43, 3')
    a('s_sub_u32 s44, s41, s44')
    a('v_lshrrev_b32 v2, 3, v0')
    a('v_and_b32 v3, 7, v0')
    a('v_mul_u32_u24 v4, 6912, v2')
    a('v_lshl_add_u32 v3, v3, 4, v4')
    if TP:
        a('v_lshrrev_b32 v2, 3, v1')
        a('v_min_u32 v2, 2, v2')
        a('v_lshlrev_b32 v2, 6, v2')
        a('v_and_or_b32 v2, v1, 7, v2')
        a('v_lshl_add_u32 v2, s3, 3, v2')
    a('v_lshlrev_b32 v2, 1, v2')
    a('s_mul_i32 s45, s44, 384')
    a(f's_mul_i32 s46, s44, {192 * 6912}')
    a('s_lshl_b32 s47, s43, 7')
    a('s_add_u32 s46, s46, s47')
    if TP:
        a(f's_mul_i32 s48, s44, {MR_PLANE}')
        a('s_lshl_b32 s47, s43, 8')
        a('s_add_u32 s48, s48, s47')
        a(f's_add_u32 s47, s47, {WS_CR}')
        a(f's_cmp_lt_u32 s41, {NCRIT}')
        a(f's_cselect_b32 s47, s47, {WS_MR - 18 * 256}')
        a('s_add_u32 s48, s48, s47')
        a('s_memrealtime s[52:53]')
    else:
        a(f's_cmp_lt_u32 s41, {NCRIT}')
        a(f's_cselect_b32 s48, {CR_PLANE}, {MR_PLANE}' if False else 's_cselect_b32 s48, 1, 2')
        a(f's_mul_i32 s48, s48, {CR_PLANE}')
        a('s_mul_i32 s48, s48, s44')
        a('s_lshl_b32 s47, s43, 8')
        a('s_add_u32 s48, s48, s47')
        a(f's_cmp_lt_u32 s41, {NCRIT}')
        a(f's_cselect_b32 s47, {WS_CR}, {WS_MR - 18 * 256}' if False else f's_movk_i32 s47, {WS_MR - 18 * 256 - WS_CR}')
        a('s_cselect_b32 s47, 0, s47')
        a('s_add_u32 s48, s48, s47')
        a(f's_add_u32 s48, s48, {WS_CR}')
    a(f'v_lshlrev_b32 v{A_L4}, 2, v1')
    a(f'v_lshlrev_b32 v{A_L16}, 4, v1')
    for i in range(4):
        a(f'v_mov_b32 v{T0_ + i}, -1')
    for i in range(3):
        a(f'v_mov_b32 v{CV + i}, 0')
    a('s_bfe_u32 s49, s2, 0x10001')
    a('s_lshl_b32 s49, s49, 3')
    a('s_bfe_u32 s50, s2, 0x30003')
    a('s_add_u32 s49, s49, s50')
    a('s_bfe_u32 s50, s2, 0x10002')
    a('s_lshl_b32 s50, s50, 2')
    a('s_lshr_b32 s51, s2, 6')
    a('s_add_u32 s50, s50, s51')
    a('s_lshl_b32 s50, s50, 1')
    a('s_and_b32 s51, s2, 1')
    a('s_add_u32 s50, s50, s51')
    a('s_lshl_b32 s56, s49, 4')
    a('s_add_u32 s56, s56, s50')
    a('s_lshl_b32 s49, s49, 2')
    a('s_add_u32 s49, s49, s39')
    a('s_lshl_b32 s49, s49, 4')
    a('s_add_u32 s49, s49, s50')
    a('s_lshl_b32 s49, s49, 1')
    a('s_add_u32 s49, s49, s40')
    a('s_mul_i32 s49, s49, 1152')
    a('s_lshl_b32 s50, s39, 4')
    a('v_add_u32 v7, s50, v5')
    a(f's_mul_i32 s55, s3, {XROW}')
    if TP:
        a(f's_xor_b32 s50, s2, {LEAD0}')
        a('s_or_b32 s50, s50, s3')
        a('s_waitcnt lgkmcnt(0)')
        a('s_cbranch_scc1 f_nolead')
        a('s_or_b32 s59, s52, 1')
        a('v_mov_b32 v4, s59')
        a('s_mov_b64 exec, 1')
        vm('ann', f'buffer_store_dword v4, off, {sq(SDB)}, 0 offset:252 sc1', cond=True)
        a('s_mov_b64 exec, -1')
        a.label('f_nolead')
        a('s_or_b32 s59, s52, 1')
    else:
        a(f's_sub_u32 s51, s2, {LEAD0}')
        a(f's_cmp_lt_u32 s51, {NLEAD}')
        a('s_cselect_b32 s50, s3, 0')
        a('s_cmp_eq_u32 s50, 6')
        a('s_waitcnt lgkmcnt(0)')
        a('s_cbranch_scc0 f_nolead')
        a('s_mul_i32 s50, s51, 12288')
        a(f's_add_u32 s50, s50, {WS_CR}')
        assert 3 * CR_PLANE + NPOI * 64 <= NLEAD * 12288 == WS_MR - WS_CR
        for i in range(12):
            vm('lead', f'buffer_store_dwordx4 v[{T0_}:{T0_ + 3}], v{A_L16}, {sq(SWS)}, s50 offen offset:{1024 * (i % 4)} sc1', cond=True)
            if i % 4 == 3 and i < 11:
                a('s_add_u32 s50, s50, 4096')
        a('s_lshl_b32 s50, s51, 7')
        a('s_memrealtime s[46:47]')
        a('s_waitcnt vmcnt(0) lgkmcnt(0)')
        a('s_or_b32 s46, s46, 1')
        a('v_mov_b32 v4, s46')
        a('s_mov_b64 exec, 1')
        vm('ann', f'buffer_store_dword v4, off, {sq(SDB)}, s50 sc1', cond=True)
        a('s_mov_b64 exec, -1')
        a.label('f_nolead')
        a('s_cmp_eq_u32 s3, 7')
        a('s_cbranch_scc0 f_noslot')
        a(f's_sub_u32 s50, s2, {POI0}')
        a(f's_cmp_lt_u32 s50, {NPOI}')
        a('s_cbranch_scc0 f_noslot')
        a(f's_mul_i32 s50, s2, {POI_N * 1024}')
        a(f's_add_u32 s50, s50, {WS_HB - POI0 * POI_N * 1024}')
        assert NPOI * POI_N * 1024 >= 256 * PITCH and WS_HB + NPOI * POI_N * 1024 <= WS_ZB
        for i in range(POI_N):
            vm('hbp', f'buffer_store_dwordx4 v[{T0_}:{T0_ + 3}], v{A_L16}, {sq(SWS)}, s50 offen offset:{1024 * (i % 4)} sc1', cond=True)
            if i % 4 == 3 and i < POI_N - 1:
                a('s_add_u32 s50, s50, 4096')
        a.label('f_noslot')
    if OPT.get('nsl'):
        a(f's_cmp_lt_u32 s41, {NCRIT}')
        a('s_cbranch_scc1 f_nonsl')
        if OPT.get('xcrit') == 2:
            a('s_cmp_ge_u32 s36, 4')
            a('s_cbranch_scc1 f_nonsl')
        a(f's_sleep {OPT["nsl"]}')
        a.label('f_nonsl')
    a(f's_cmp_lt_u32 s41, {NTASK}')
    a('s_cbranch_scc0 f_nogemv1')
    if OPT.get('nsl2'):
        a(f's_cmp_lt_u32 s41, {NCRIT}')
        a('s_cbranch_scc1 f_nonsl2')
        a(f's_sleep {OPT["nsl2"]}')
        a.label('f_nonsl2')
    for m in range(1 if TP else 3):
        vm('c', f'buffer_load_short_d16_hi v{CV + m}, v2, {sq(SC_)}, s45 offen offset:{128 * m}' + pol('p_c'), cond=True)
    for m in range(3):
        vm('wm', f'buffer_load_dwordx4 v[{WM + 4 * m}:{WM + 4 * m + 3}], v3, {sq(SWM)}, s46 offen' + pol('p_wm'), cond=True)
        if m < 2:
            a(f's_add_u32 s46, s46, {64 * 6912}')

    def wt_loads():
        a('s_lshl_b32 s50, s37, 2')
        a('s_add_u32 s50, s50, s39')
        a('s_lshl_b32 s50, s50, 3')
        a('s_add_u32 s50, s50, s36')
        a('s_mul_i32 s50, s50, 4624')
        a(f'v_add_u32 v2, s50, v{A_L16}')
        a('v_add_u32 v3, 4096, v2')
        a(f's_mul_i32 s50, s3, {WT_BLK}')
        a(f's_add_u32 m0, s50, {L_WT}')
        a('s_cmp_eq_u32 s40, 0')
        a('s_cbranch_scc1 f_wt_re')
        for r in range(2):
            a(f's_mov_b32 s{SWR + r}, s{SWI + r}')
        a.label('f_wt_re')
        for jj in range(4):
            vm('wl', f'buffer_load_dwordx4 v2, {sq(SWR)}, 0 offen offset:{1024 * jj}' + pol('p_wl') + ' lds', cond=True)
        a('s_add_u32 m0, m0, 4096')
        a('s_mov_b32 exec_hi, 1')
        vm('wl', f'buffer_load_dwordx4 v3, {sq(SWR)}, 0 offen' + pol('p_wl') + ' lds', cond=True)
        a('s_mov_b64 exec, -1')

    def wt_loads2(sfx):
        a('s_and_b32 s50, s37, 7')
        a('s_lshl_b32 s50, s50, 2')
        a('s_add_u32 s50, s50, s39')
        a('s_lshl_b32 s50, s50, 3')
        a('s_add_u32 s50, s50, s36')
        a('s_mul_i32 s50, s50, 4624')
        a('s_lshr_b32 s51, s2, 6')
        a('s_mul_i32 s51, s51, 1152')
        a('s_add_u32 s50, s50, s51')
        a(f's_mul_i32 s51, s3, {WT_BLK}')
        a(f's_add_u32 m0, s51, {L_WT}')
        a('s_cmp_eq_u32 s40, 0')
        for r in range(2):
            a(f's_cselect_b32 s{SWR + r}, s{SWR + r}, s{SWI + r}')
        vm('wl', f'buffer_load_dwordx4 v{A_L16}, {sq(SWR)}, s50 offen' + pol('p_wl') + ' lds', cond=True)
        a('s_mov_b64 exec, 0x1ff')
        vm('wl', f'buffer_load_dwordx4 v{A_L16}, {sq(SWR)}, s50 offen offset:1024' + pol('p_wl') + ' lds', cond=True)
        a('s_mov_b64 exec, -1')
    if TP:
        a(f's_cmp_lt_u32 s41, {NCRIT}')
        a('s_cbranch_scc1 f_issue2')
        a.label('f_nogemv1')
    else:
        a('s_branch f_issue2')
        a.label('f_nogemv1')
        a(f's_cmp_lt_u32 s2, {TASK0}')
        a('s_cbranch_scc0 f_issue2')
        wt_loads()
        a.label('f_issue2')

    def xrow(tag, lbase, soff):
        a(f's_add_u32 m0, s55, {lbase}')
        vm(tag, f'buffer_load_dwordx4 v{A_L16}, {sq(SX)}, s{soff} offen' + pol('p_' + tag) + ' lds')
        a('s_mov_b64 exec, 0xff')
        vm(tag, f'buffer_load_dwordx4 v{A_L16}, {sq(SX)}, s{soff} offen offset:1024' + pol('p_' + tag) + ' lds')
        a('s_mov_b64 exec, -1')
    xrow('x1', L_X1, 49)

    def hbpoison():
        a(f's_sub_u32 s50, s2, {POI0}')
        a(f's_cmp_lt_u32 s50, {NPOI}')
        a('s_cbranch_scc0 f_noslot')
        a('s_lshl_b32 s50, s50, 3')
        a('s_add_u32 s50, s50, s3')
        a(f's_mul_i32 s50, s50, {POI_W * 1024}')
        a(f's_add_u32 s50, s50, {WS_HB}')
        assert NPOI * POI_W * 8192 >= 256 * PITCH and WS_HB + NPOI * POI_W * 8192 <= WS_ZB and POI_W <= 4
        for i in range(POI_W):
            vm('hbp', f'buffer_store_dwordx4 v[{T0_}:{T0_ + 3}], v{A_L16}, {sq(SWS)}, s50 offen offset:{1024 * i} sc1', cond=True)
        a.label('f_noslot')
    if TP:
        wt_loads2('a')
        hbpoison()
        a.label('f_issue2')

    def touch_addr():
        a(f's_mul_i32 s57, s36, {27 * 171}')
        a('s_lshr_b32 s57, s57, 10')
        a('s_lshl_b32 s57, s57, 8')
        a('v_mul_u32_u24 v2, 26, v1')
        a('v_lshrrev_b32 v2, 8, v2')
        a(f'v_mul_u32_u24 v2, {F * 2 - 1280}, v2')
        a(f'v_lshl_add_u32 v{A_TCH}, v1, 7, v2')

    def start_touch():
        touch_addr()
        a('s_lshl_b32 s58, s37, 3')
        a('s_add_u32 s58, s58, s3')
        a(f's_mul_i32 s58, s58, {OPT["tsn"] * F * 2}')
        a(f's_add_u32 s58, s58, {6 * OPT.get("tsf", 43) * F * 2}')
        a('s_add_u32 s58, s58, s57')
        a(f's_bfm_b64 exec, {10 * OPT["tsn"]}, 0')
        vm('ts', f'buffer_load_dword v103, v{A_TCH}, {sq(SW1)}, s58 offen')
        a('s_mov_b64 exec, -1')
    if OPT.get('tsn') and not OPT.get('tsl'):
        start_touch()
    if OPT.get('prio'):
        a('s_setprio 0')
    k.mark('issue')
    T = T0_ + 4
    NF, G4F, BA = T + 12, T + 13, T + 14

    def const1(first=0, last=16):
        if first >= last:
            return
        a(f'v_cvt_f32_u32 v{NF}, v7')
        a(f'v_cvt_f32_u32 v{G4F}, v6')
        a(f'v_mul_f32 v{BA}, v{G4F}, v{NF}')
        a(f'v_mul_f32 v{BA}, {f32(4 / 64.0)}, v{BA}')
        gen_f64_interleaved(a, NF, BA, FRE, FIM, T, first, last)

    def const1b():
        a(f'v_cvt_f32_u32 v{T + 10}, v1')
        for k1 in range(1, 5):
            a(f'v_mul_f32 v{T + k1}, {f32(k1 / 576.0)}, v{T + 10}')
        for k1 in range(1, 5):
            a(f'v_cos_f32 v{TW1 + k1 - 1}, v{T + k1}')
            a(f'v_sin_f32 v{TW1 + 4 + k1 - 1}, v{T + k1}')

    def zslots():
        a('s_add_u32 s53, s38, 64')
        a('s_lshl_b32 s54, s36, 2')
        a('s_add_u32 s54, s54, s37')
        a('s_cmp_lt_u32 s2, 32')
        a('s_cselect_b32 s54, s54, -1')
        a('s_cmp_eq_u32 s2, 32')
        a('s_cselect_b32 s54, 32, s54')
        a('s_cmp_eq_u32 s40, 0')
        a('s_cselect_b32 s42, s53, s54')

    def zpoison4():
        a('s_cmp_lt_u32 s3, 4')
        a('s_cbranch_scc1 f_nozp2')
        a('s_lshl_b32 s51, s39, 11')
        a(f's_add_u32 s51, s51, {WS_ZB}')
        a('s_lshl_b32 s50, s53, 13')
        a('s_add_u32 s50, s50, s51')
        for h in range(2):
            vm('zp', f'buffer_store_dwordx4 v[{T0_}:{T0_ + 3}], v{A_L16}, {sq(SWS)}, s50 offen offset:{1024 * h} sc1', cond=True)
        a('s_cmp_lt_u32 s2, 33')
        a('s_cbranch_scc0 f_nozp2')
        a('s_lshl_b32 s50, s54, 13')
        a('s_add_u32 s50, s50, s51')
        for h in range(2):
            vm('zp', f'buffer_store_dwordx4 v[{T0_}:{T0_ + 3}], v{A_L16}, {sq(SWS)}, s50 offen offset:{1024 * h} sc1', cond=True)
        a.label('f_nozp2')

    def flzero():
        a('s_cmp_eq_u32 s3, 6')
        a('s_cbranch_scc0 f_nofl')
        if FZ:
            a('s_lshl_b32 s50, s2, 10')
            a(f's_add_u32 s50, s50, {WS_FLG}')
            vm('fl', f'buffer_store_dwordx4 v[{X3}:{X3 + 3}], v{A_L16}, {sq(SWS)}, s50 offen sc1', cond=True)
        else:
            a('v_mov_b32 v3, 0')
            a('s_lshl_b32 s50, s2, 8')
            a(f's_add_u32 s50, s50, {WS_FLAGS}')
            vm('fl', f'buffer_store_dword v3, v{A_L4}, {sq(SWS)}, s50 offen', cond=True)
        a.label('f_nofl')

    def zpoison(va):
        a(f'v_lshlrev_b32 v{va}, 4, v0')
        a('s_add_u32 s53, s38, 64')
        a('s_lshl_b32 s50, s53, 13')
        a(f's_add_u32 s50, s50, {WS_ZB}')
        vm('zp', f'buffer_store_dwordx4 v[{T0_}:{T0_ + 3}], v{va}, {sq(SWS)}, s50 offen sc1')
        a('s_lshl_b32 s54, s36, 2')
        a('s_add_u32 s54, s54, s37')
        a('s_cmp_lt_u32 s2, 32')
        a('s_cselect_b32 s54, s54, -1')
        a('s_cmp_eq_u32 s2, 32')
        a('s_cselect_b32 s54, 32, s54')
        a('s_cmp_eq_u32 s40, 0')
        a('s_cselect_b32 s42, s53, s54')
        a('s_cmp_lt_u32 s2, 33')
        a('s_cbranch_scc0 f_nozp2')
        a('s_lshl_b32 s50, s54, 13')
        a(f's_add_u32 s50, s50, {WS_ZB}')
        vm('zp2', f'buffer_store_dwordx4 v[{T0_}:{T0_ + 3}], v{va}, {sq(SWS)}, s50 offen sc1', cond=True)
        a.label('f_nozp2')
        flzero()

    def h2poison(pv=T0_):
        if OPT.get('sp1'):
            a(f's_cmp_lt_u32 s38, {8 * OPT["sp1"]}')
            a('s_cbranch_scc0 f_noh2p')
            if pv != T0_:
                for i in range(4):
                    a(f'v_mov_b32 v{pv + i}, -1')
            a(f's_mul_i32 s50, s38, {k_tail.H2_BLK}')
            a(f's_add_u32 s50, s50, {WS_H2}')
            vm('h2p', f'buffer_store_dwordx4 v[{pv}:{pv + 3}], v{A_H2B}, {sq(SWS)}, s50 offen sc1', cond=True)
            a('s_cmp_eq_u32 s3, 1')
            a('s_cbranch_scc0 f_noh2p')
            vm('h2p', f'buffer_store_dwordx4 v[{pv}:{pv + 3}], v{A_H2C}, {sq(SWS)}, s50 offen sc1', cond=True)
            a.label('f_noh2p')

    def wt_addr(vg, vt):
        a(f'v_lshrrev_b32 v{vt}, 3, v0')
        if WTC:
            a(f'v_lshlrev_b32 v{vg}, 4, v0')
            a(f's_mul_i32 s50, s2, {WT_PITCH}')
            a(f's_add_u32 s50, s50, {WS_WT}')
            return
        a(f'v_and_b32 v{vg}, 7, v0')
        a(f'v_lshlrev_b32 v{vg}, 4, v{vg}')
        a(f'v_lshl_add_u32 v{vg}, v{vt}, 13, v{vg}')
        a('s_lshr_b32 s50, s36, 1')
        a('s_lshl_b32 s50, s50, 1')
        a('s_lshr_b32 s51, s37, 2')
        a('s_add_u32 s50, s50, s51')
        a('s_lshl_b32 s50, s50, 2')
        a('s_and_b32 s51, s37, 3')
        a('s_add_u32 s50, s50, s51')
        a('s_lshl_b32 s50, s50, 1')
        a('s_and_b32 s51, s36, 1')
        a('s_add_u32 s50, s50, s51')
        a('s_lshl_b32 s50, s50, 7')
        a(f's_add_u32 s50, s50, {WS_WT}')

    def wt_mask(vg, vt):
        a(f'v_cmp_gt_u32 vcc, 33, v{vt}')
        a(f'v_mov_b32 v{vt}, 0x7f000000')
        a(f'v_cndmask_b32 v{vg}, v{vt}, v{vg}, vcc')

    C1P = OPT.get('c1pre', 0) if TP else 16
    if not TP:
        const1()
    a(f'v_mul_u32_u24 v{A_X3}, 1152, v6')
    a(f'v_lshl_add_u32 v{A_X3}, v7, 1, v{A_X3}')
    a('s_lshl_b32 s52, s38, 1')
    a('s_add_u32 s52, s52, s40')
    a('s_mul_i32 s52, s52, 4608')

    def x3row():
        a('s_lshl_b32 s49, s38, 3')
        a('s_add_u32 s49, s49, s3')
        a('s_mul_i32 s49, s49, 1152')
    if not TP:
        x3row()
    for i in range(9):
        a(f'v_mov_b32 v{X1 + i}, 0')
    for i in range(9):
        a(f'v_mov_b32 v{X3 + i}, 0')
    if TP:
        zslots()
    else:
        zpoison(2)
        const1b()
    if OPT.get('tsn') and OPT.get('tsl'):
        start_touch()
    a('s_lshl_b32 s50, s40, 2')
    a('s_add_u32 s50, s50, s39')
    a(f's_mul_i32 s50, s50, {T1S}')
    a(f's_add_u32 s50, s50, {L_T1}')
    a(f'v_add_u32 v{A_T1W}, s50, v{A_L4}')
    a(f'v_mul_u32_u24 v2, {T1S}, v5')
    a('v_lshl_add_u32 v2, v6, 4, v2')
    a(f's_mul_i32 s50, s40, {32 * T1S}')
    a(f's_add_u32 s51, s50, {L_T1}')
    a(f'v_add_u32 v{A_T1R}, s51, v2')
    a(f's_add_u32 s51, s50, {L_G2}')
    a(f'v_add_u32 v{A_GR}, s51, v2')
    a(f'v_mul_u32_u24 v2, {4 * T1S}, v6')
    a('v_lshl_add_u32 v2, v7, 2, v2')
    a(f'v_add_u32 v{A_GW}, s51, v2')
    a('v_lshrrev_b32 v2, 1, v6')
    a('v_lshl_add_u32 v2, v2, 6, v7')
    a('v_and_b32 v3, 1, v6')
    a('v_lshlrev_b32 v3, 4, v3')
    a('v_lshl_add_u32 v2, v2, 5, v3')
    a('s_lshl_b32 s50, s40, 13')
    a(f'v_add_u32 v{A_HB0}, s50, v2')
    a(f'v_add_u32 v{A_HB1}, 4096, v2')
    a('v_cmp_lt_u32 vcc, 1, v6')
    a('s_cmp_eq_u32 s40, 1')
    a('s_cselect_b64 s[50:51], vcc, 0')
    a('v_mov_b32 v3, 0x7f000000')
    a(f'v_cndmask_b32 v{A_HB0}, v{A_HB0}, v3, s[50:51]')
    a(f's_mul_i32 s56, s56, {PITCH}')
    a(f's_add_u32 s56, s56, {WS_HB}')
    a('v_lshrrev_b32 v2, 1, v5')
    a('v_lshl_add_u32 v2, v6, 4, v2')
    a(f'v_mul_u32_u24 v2, {PITCH}, v2')
    a('v_and_b32 v3, 1, v5')
    a(f'v_lshl_add_u32 v{A_P2LD}, v3, 4, v2')
    a('v_lshlrev_b32 v2, 6, v7')
    a(f'v_lshl_add_u32 v{A_ZST}, v6, 4, v2')
    a('v_lshrrev_b32 v2, 1, v1')
    a('s_and_b32 s50, s3, 1')
    a('s_lshl_b32 s50, s50, 5')
    a('v_add_u32 v2, s50, v2')
    a('v_and_b32 v3, 1, v1')
    a('s_lshr_b32 s51, s3, 1')
    a(f'v_mul_u32_u24 v4, {2 * P3_PLANE}, v3')
    a('v_lshl_add_u32 v4, v2, 3, v4')
    a('s_mul_i32 s50, s51, 576')
    a(f's_add_u32 s50, s50, {L_Z3}')
    a(f'v_add_u32 v{A_ZW}, s50, v4')
    a('v_lshlrev_b32 v3, 4, v3')
    a(f'v_lshl_add_u32 v{A_ZLD1}, v2, 13, v3')
    a(f'v_add_u32 v{A_ZLD1}, {256 * 8192}, v{A_ZLD1}')
    a('v_sub_u32 v4, 64, v2')
    a('v_min_u32 v4, v4, v2')
    a('s_cmp_eq_u32 s51, 0')
    a('s_cselect_b64 vcc, -1, 0')
    a('v_cndmask_b32 v2, v2, v4, vcc')
    a('s_lshl_b32 s51, s51, 19')
    a(f'v_lshl_add_u32 v{A_ZLD0}, v2, 13, v3')
    a(f'v_add_u32 v{A_ZLD0}, s51, v{A_ZLD0}')
    a('v_lshrrev_b32 v2, 2, v5')
    a('v_lshl_add_u32 v2, v6, 2, v2')
    a('v_lshlrev_b32 v2, 3, v2')
    a(f's_mul_i32 s50, s40, {2 * P3_PLANE}')
    a(f's_add_u32 s50, s50, {L_Z3}')
    a(f'v_add_u32 v{A_TR0}, s50, v2')
    a('v_and_b32 v2, 3, v1')
    a('v_add_u32 v2, 1, v2')
    a('v_mul_u32_u24 v2, 576, v2')
    a(f'v_add_u32 v{A_TRM}, v2, v{A_TR0}')
    a('s_lshl_b32 s50, s40, 7')
    a(f's_add_u32 s50, s50, {L_ST}')
    a(f'v_lshl_add_u32 v{A_STR}, v6, 5, s50')
    a('s_lshl_b32 s50, s39, 3')
    a(f'v_add_u32 v{A_STW}, s50, v{A_STR}')
    a(f's_mov_b32 s50, {393216 - 1536}')
    if FZ:
        a('v_lshl_add_u32 v2, v6, 6, v7')
        a('s_lshl_b32 s51, s40, 3')
        a(f's_add_u32 s51, s51, {L_Z3}')
        a(f'v_lshl_add_u32 v{A_H2A}, v2, 4, s51')
    if FZ and k_tail.H2S:
        a('s_and_b32 s51, s38, 1')
        a('s_lshl_b32 s51, s51, 1')
        for r, src, add in ((A_H2B, 0, 0), (A_X3, 0, 256), (A_H2C, 1, 512)):
            a(f'v_add_u32 v{r}, {add}, v{src}')
            a(f'v_mul_u32_u24 v3, 683, v{r}')
            a('v_lshrrev_b32 v3, 16, v3')
            a('v_mul_u32_u24 v2, 96, v3')
            a(f'v_sub_u32 v{r}, v{r}, v2')
            k_tail.h2_line(a, r, 2, 's51')
            a(f'v_lshl_add_u32 v{r}, v3, 19, v{r}')
    elif FZ:
        a('v_mul_u32_u24 v3, 683, v0')
        a('v_lshrrev_b32 v3, 16, v3')
        a('v_mul_lo_u32 v3, v3, s50')
        a(f'v_lshl_add_u32 v{A_H2B}, v0, 4, v3')
        a('v_add_u32 v2, 256, v0')
        a('v_mul_u32_u24 v3, 683, v2')
        a('v_lshrrev_b32 v3, 16, v3')
        a('v_mul_lo_u32 v3, v3, s50')
        a(f'v_lshl_add_u32 v{A_X3}, v2, 4, v3')
        a(f'v_add_u32 v{A_H2C}, {8192 + 5 * (393216 - 1536)}, v{A_L16}')
    else:
        for mm, r in enumerate((A_H2A, A_H2B, A_H2C)):
            a('v_lshl_add_u32 v2, v6, 6, v7')
            a(f'v_add_u32 v2, {256 * mm}, v2')
            a('v_mul_u32_u24 v3, 683, v2')
            a('v_lshrrev_b32 v3, 16, v3')
            a('v_mul_lo_u32 v3, v3, s50')
            a(f'v_lshl_add_u32 v{r}, v2, 4, v3')
        a('v_cmp_lt_u32 vcc, 0, v6')
        a('v_mov_b32 v3, 0x7f000000')
        a(f'v_cndmask_b32 v{A_H2C}, v{A_H2C}, v3, vcc')
    a(f'v_lshlrev_b32 v{A_N4}, 2, v7')
    a(f'v_mul_u32_u24 v2, {XROW}, v6')
    a('v_lshl_add_u32 v2, v7, 1, v2')
    a(f's_mul_i32 s50, s40, {4 * XROW}')
    a(f's_add_u32 s50, s50, {L_X3}')
    a(f'v_add_u32 v{A_WT}, s50, v2')
    a('s_and_b32 s50, s2, 1')
    a('s_mul_i32 s50, s50, 1152')
    a('v_cmp_lt_u32 vcc, 431, v0')
    a('v_mov_b32 v3, s50')
    a('v_cndmask_b32 v3, 0, v3, vcc')
    a(f'v_lshl_add_u32 v{A_MR}, v0, 4, v3')
    if not OPT.get('tsn'):
        touch_addr()
    if TP:
        a(f's_cmp_lt_u32 s41, {NCRIT}')
        a('s_cbranch_scc0 f_notag')
        xrow('x1', L_X1, 49)
        wt_loads2('b')
        a('s_lshl_b32 s50, s41, 2')
        a('v_mov_b32 v4, s59')
        a('s_mov_b64 exec, 1')
        a('s_cmp_eq_u32 s3, 7')
        a('s_cbranch_scc0 f_filler')
        a(f'buffer_store_dword v4, off, {sq(SDB)}, s50 sc1')
        a('s_branch f_filled')
        a.label('f_filler')
        a(f'buffer_load_dword v99, off, {sq(SC_)}, 0')
        a.label('f_filled')
        a('s_mov_b64 exec, -1')
        const1(0, C1P)
        a('s_branch f_c1done')
        a.label('f_notag')
        const1(0, 16)
        const1b()
        a.label('f_c1done')
        x3row()
    else:
        h2poison()
    k.mark('const')

    a(f's_cmp_lt_u32 s41, {NTASK}')
    a('s_cbranch_scc0 f_other')
    a('s_mov_b32 s47, 0xffff0000')
    rest = 4 if TP else 2 + 1 + (1 if OPT.get('tsn') else 0)

    def gwait(n):
        if TP:
            lab = a.newlabel('gw')
            a(f's_waitcnt vmcnt({n + 1})')
            a(f's_cbranch_scc1 {lab}')
        a(f's_waitcnt vmcnt({n})')
        if TP:
            a.label(lab)

    def gemv(nb):
        if TP:
            a(f's_cmp_lt_u32 s41, {NCRIT}')
        if TP:
            a('v_lshrrev_b32 v2, 3, v1')
            a('v_lshlrev_b32 v2, 2, v2')
        gwait(3 + nb + rest)
        nc = 1 if TP else 3
        for m in range(nc):
            a(f'v_mul_f32 v{T + m}, {f32(-LOG2E)}, v{CV + m}')
        for m in range(nc):
            a(f'v_exp_f32 v{T + m}, v{T + m}')
        for m in range(nc):
            a(f'v_add_f32 v{T + m}, 1.0, v{T + m}')
        for m in range(nc):
            a(f'v_rcp_f32 v{T + m}, v{T + m}')
        for m in range(nc):
            a(f'v_mul_f32 v{CV + m}, v{CV + m}, v{T + m}')
        round_list(a, [CV + m for m in range(nc)], T, 47)
        if TP:
            for m in (1, 2, 0):
                a(f'ds_bpermute_b32 v{CV + m}, v2, v{CV} offset:{32 * m}')
        for m in range(3):
            gwait(2 - m + nb + rest)
            for d in range(4):
                w = WM + 4 * m + d
                t = T + 2 * (d if TP else d % 2)
                a(f'v_lshlrev_b32 v{t}, 16, v{w}')
                a(f'v_and_b32 v{t + 1}, s47, v{w}')
                if TP:
                    continue
                op = 'v_mul_f32' if m == 0 else 'v_fmac_f32'
                a(f'{op} v{GACC + 2 * d}, v{CV + m}, v{t}')
                a(f'{op} v{GACC + 2 * d + 1}, v{CV + m}, v{t + 1}')
            if TP:
                if m == 0:
                    a('s_waitcnt lgkmcnt(0)')
                cp = f'v[{CV + (m & 2)}:{CV + (m & 2) + 1}]'
                for d in range(4):
                    g, t = f'v[{GACC + 2 * d}:{GACC + 2 * d + 1}]', f'v[{T + 2 * d}:{T + 2 * d + 1}]'
                    if m == 0:
                        a(f'v_pk_mul_f32 {g}, {t}, {cp} op_sel_hi:[1,0]')
                    elif m == 1:
                        a(f'v_pk_fma_f32 {g}, {t}, {cp}, {g} op_sel:[0,1,0]')
                    else:
                        a(f'v_pk_fma_f32 {g}, {t}, {cp}, {g} op_sel_hi:[1,0,1]')
    gemv(0)
    for p in range(4):
        a(f'v_permlane16_swap_b32 v{GACC + 2 * p}, v{GACC + 2 * p + 1}')
    for p in range(4):
        a(f'v_add_f32 v{GACC + 2 * p}, v{GACC + 2 * p}, v{GACC + 2 * p + 1}')
    for q in range(2):
        a(f'v_permlane32_swap_b32 v{GACC + 4 * q}, v{GACC + 4 * q + 2}')
    for q in range(2):
        a(f'v_add_f32 v{GACC + 4 * q}, v{GACC + 4 * q}, v{GACC + 4 * q + 2}')
    for q in range(2):
        a(f'v_add_f32_dpp v{GACC + 4 * q}, v{GACC + 4 * q}, v{GACC + 4 * q} row_ror:8 {DPPM}')
    a('v_cmp_lt_u32 vcc, 7, v5')
    a(f'v_cndmask_b32 v{GACC}, v{GACC}, v{GACC + 4}, vcc')
    a('v_and_b32 v2, 7, v5')
    a('v_lshrrev_b32 v3, 3, v5')
    a('v_lshl_add_u32 v2, v2, 1, v3')
    a('v_lshl_add_u32 v2, v2, 2, v6')
    a('s_lshl_b32 s50, s3, 8')
    a(f's_add_u32 s50, s50, {L_GR}')
    a('v_lshl_add_u32 v2, v2, 2, s50')
    a(f'ds_write_b32 v2, v{GACC}')

    def greduce():
        for p in range(4):
            a(f'ds_read2st64_b32 v[{GACC + 2 * p}:{GACC + 2 * p + 1}], v{A_L4} offset0:{L_GR // 256 + 2 * p} offset1:{L_GR // 256 + 2 * p + 1}')
        a('v_lshlrev_b32 v2, 3, v1')
        a('s_waitcnt lgkmcnt(0)')
        pk(a, 'add', GACC, GACC, GACC + 2)
        pk(a, 'add', GACC + 4, GACC + 4, GACC + 6)
        pk(a, 'add', GACC, GACC, GACC + 4)
        a(f'v_add_f32 v{GACC}, v{GACC}, v{GACC + 1}')

    def wt_work():
        wt_addr(3, 4)
        a('v_and_b32 v2, 7, v0')
        a('v_mul_u32_u24 v2, 578, v2')
        a('v_lshl_add_u32 v2, v4, 1, v2')
        a(f'v_add_u32 v2, {L_WT}, v2')

        def wt_reads(r):
            b = WL + 8 * (r % 3)
            for i in range(4):
                a(f'ds_read_u16 v{b + i}, v2 offset:{i * WT_BLK + 128 * r}')
                a(f'ds_read_u16 v{b + 4 + i}, v2 offset:{(4 + i) * WT_BLK + 128 * r}')
        wt_reads(0)
        for r in range(5):
            if r < 4:
                wt_reads(r + 1)
            b = WL + 8 * (r % 3)
            o = WL + 24 + 4 * (r % 2)
            a(f's_waitcnt lgkmcnt({8 if r < 4 else 0})')
            for i in range(4):
                a(f'v_lshl_or_b32 v{o + i}, v{b + 4 + i}, 16, v{b + i}')
            if r == 4:
                wt_mask(3, 4)
            vm('wt', f'buffer_store_dwordx4 v[{o}:{o + 3}], v3, {sq(SWS)}, s50 offen sc1', cond=True)
            if r < 4:
                a(f's_add_u32 s50, s50, {WT_STEP}')

    def wt_work2():
        a('v_subrev_u32 v4, 192, v0')
        a('v_lshlrev_b32 v3, 4, v4')
        a(f's_mul_i32 s50, s2, {WT_PITCH}')
        a(f's_add_u32 s50, s50, {WS_WT}')
        a('s_add_u32 s51, s50, 5120')
        a('v_and_b32 v2, 1, v0')
        a('v_mul_u32_u24 v2, 577, v2')
        a('v_add_u32 v2, v2, v4')
        a('s_lshr_b32 s46, s2, 6')
        a('s_lshl_b32 s46, s46, 2')
        a(f's_add_u32 s46, s46, {L_WT}')
        a('v_add_u32 v2, s46, v2')
        for r in range(2):
            for i in range(4):
                a(f'ds_read_u16 v{WL + 8 * r + i}, v2 offset:{i * WT_BLK + 320 * r}')
                a(f'ds_read_u16 v{WL + 8 * r + 4 + i}, v2 offset:{(4 + i) * WT_BLK + 320 * r}')
        a(f'v_cmp_gt_u32 vcc, {264 if OPT.get("wtfull") else 258}, v4')
        a('v_mov_b32 v4, 0x7f000000')
        a('v_cndmask_b32 v4, v4, v3, vcc')
        for r in range(2):
            b = WL + 8 * r
            a(f's_waitcnt lgkmcnt({8 - 8 * r})')
            for i in range(4):
                a(f'v_lshl_or_b32 v{b + i}, v{b + 4 + i}, 16, v{b + i}')
            vm('wt', f'buffer_store_dwordx4 v[{b}:{b + 3}], v{3 + r}, {sq(SWS)}, s{50 + r} offen sc1', cond=True)
    if TP:
        k.mark('gv0')
        a(f's_cmp_lt_u32 s41, {NCRIT}')
        a('s_cbranch_scc0 f_other')
        a('s_waitcnt lgkmcnt(0)')
        a('s_barrier')
        a('s_cmp_eq_u32 s3, 7')
        a('s_cbranch_scc0 f_noposta')
        greduce()
        a(f'v_mov_b32 v{GACC + 1}, s59')
        vm('mp', f'buffer_store_dwordx2 v[{GACC}:{GACC + 1}], v2, {sq(SWS)}, s48 offen sc1', cond=True)
        k.mark('gv1')
        a('s_waitcnt vmcnt(4)')
        a('s_branch f_ln')
        a.label('f_noposta')
        a('s_waitcnt vmcnt(3)')
        a('s_branch f_ln')
        a.label('f_other')
        a(f's_waitcnt vmcnt({2 + POI_W})')
        a(f's_cmp_lt_u32 s2, {POI0}')
        a('s_cbranch_scc0 f_poi1')
        a('s_waitcnt vmcnt(2)')
        a('s_branch f_ln')
        a.label('f_poi1')
        a('s_cmp_eq_u32 s3, 7')
        a('s_cbranch_scc0 f_ln')
        a(f'buffer_load_dword v99, off, {sq(SDB)}, 0 offset:252 sc1')
    else:
        k.mark('gv0')
        a('s_cmp_eq_u32 s3, 7')
        a('s_cbranch_scc0 f_nochka')
        announce(a, 'f_an2a', 50, 2, 3)
        k.mark('gv1')
        a(f's_sub_u32 s50, s2, {POI0}')
        a(f's_cmp_lt_u32 s50, {NPOI}')
        a('s_cbranch_scc0 f_nochka')
        a('s_lshl_b32 s50, s50, 6')
        a(f's_add_u32 s50, s50, {WS_PF}')
        a('s_mov_b64 exec, 1')
        vm('post', f'buffer_store_dword v1, off, {sq(SWS)}, s50 sc1', cond=True)
        a('s_mov_b64 exec, -1')
        a.label('f_nochka')
        a('s_waitcnt lgkmcnt(0)')
        a('s_barrier')
        a('s_cmp_eq_u32 s3, 7')
        a('s_cbranch_scc0 f_nogemv2')
        for p in range(4):
            a(f'ds_read2st64_b32 v[{GACC + 2 * p}:{GACC + 2 * p + 1}], v{A_L4} offset0:{L_GR // 256 + 2 * p} offset1:{L_GR // 256 + 2 * p + 1}')
        a('s_waitcnt lgkmcnt(0)')
        pk(a, 'add', GACC, GACC, GACC + 2)
        pk(a, 'add', GACC + 4, GACC + 4, GACC + 6)
        pk(a, 'add', GACC, GACC, GACC + 4)
        a(f'v_add_f32 v{GACC}, v{GACC}, v{GACC + 1}')
        vm('mp', f'buffer_store_dword v{GACC}, v{A_L4}, {sq(SWS)}, s48 offen sc1', cond=True)
        a('s_branch f_nogemv2')
        a.label('f_other')
        a(f's_cmp_lt_u32 s2, {TASK0}')
        a('s_cbranch_scc1 f_wt1')
        a('s_waitcnt vmcnt(0)')
        a('s_cmp_eq_u32 s3, 7')
        a('s_cbranch_scc0 f_nochkb')
        announce(a, 'f_an2b', 50, 2, 3)
        a(f's_sub_u32 s50, s2, {POI0}')
        a(f's_cmp_lt_u32 s50, {NPOI}')
        a('s_cbranch_scc0 f_nochkb')
        a('s_lshl_b32 s50, s50, 6')
        a(f's_add_u32 s50, s50, {WS_PF}')
        a('s_mov_b64 exec, 1')
        vm('post', f'buffer_store_dword v1, off, {sq(SWS)}, s50 sc1', cond=True)
        a('s_mov_b64 exec, -1')
        a.label('f_nochkb')
        if OPT.get('t0l'):
            a('s_cmp_ge_u32 s37, 29')
            a('s_cbranch_scc0 f_ln')
            a('s_sub_u32 s51, s3, 4')
            a('s_cmp_lt_u32 s51, 3')
            a('s_cbranch_scc0 f_ln')
            a('s_sub_u32 s50, s37, 29')
            a('s_mul_i32 s50, s50, 3')
            a('s_add_u32 s50, s50, s51')
            touches(a, vm, 't0', 9, 50, 103)
        a('s_branch f_ln')
        a.label('f_wt1')
        a(f's_waitcnt vmcnt({rest})')
        k.mark('gv0')
        a('s_barrier')
        k.mark('gv1')
        a.label('f_wt2')
        a('v_and_b32 v3, 7, v0')
        a('v_lshrrev_b32 v4, 3, v0')
        a('v_mul_u32_u24 v2, 578, v3')
        a('v_lshl_add_u32 v2, v4, 1, v2')
        a(f'v_add_u32 v2, {L_WT}, v2')
        a('v_lshlrev_b32 v3, 4, v3')
        a('v_lshl_add_u32 v3, v4, 13, v3')
        a('s_lshr_b32 s50, s36, 1')
        a('s_lshl_b32 s50, s50, 1')
        a('s_lshr_b32 s51, s37, 2')
        a('s_add_u32 s50, s50, s51')
        a('s_lshl_b32 s50, s50, 2')
        a('s_and_b32 s51, s37, 3')
        a('s_add_u32 s50, s50, s51')
        a('s_lshl_b32 s50, s50, 1')
        a('s_and_b32 s51, s36, 1')
        a('s_add_u32 s50, s50, s51')
        a('s_lshl_b32 s50, s50, 7')
        a(f's_add_u32 s50, s50, {WS_WT}')

        def wt_reads(r):
            b = WL + 8 * (r % 3)
            for i in range(4):
                a(f'ds_read_u16 v{b + i}, v2 offset:{i * WT_BLK + 128 * r}')
                a(f'ds_read_u16 v{b + 4 + i}, v2 offset:{(4 + i) * WT_BLK + 128 * r}')
        wt_reads(0)
        a(f's_waitcnt vmcnt({rest - 2})')
        for r in range(5):
            if r < 4:
                wt_reads(r + 1)
            b = WL + 8 * (r % 3)
            o = WL + 24 + 4 * (r % 2)
            a(f's_waitcnt lgkmcnt({8 if r < 4 else 0})')
            for i in range(4):
                a(f'v_lshl_or_b32 v{o + i}, v{b + 4 + i}, 16, v{b + i}')
            if r == 4:
                a('v_cmp_gt_u32 vcc, 33, v4')
                a('v_mov_b32 v4, 0x7f000000')
                a('v_cndmask_b32 v3, v4, v3, vcc')
            vm('wt', f'buffer_store_dwordx4 v[{o}:{o + 3}], v3, {sq(SWS)}, s50 offen sc1', cond=True)
            if r < 4:
                a(f's_add_u32 s50, s50, {64 * 8192}')
        a('s_branch f_ln')
        a.label('f_nogemv2')
        vm.wait('x1')
    a.label('f_ln')
    k.mark('gemv')
    a('v_lshlrev_b32 v2, 1, v1')
    a(f's_add_u32 s50, s55, {L_X1}')
    a('v_add_u32 v2, s50, v2')
    for i in range(9):
        a(f'ds_read_u16_d16_hi v{X1 + i}, v2 offset:{L_X1 - 65536 + 128 * i}' if False else
          f'ds_read_u16_d16_hi v{X1 + i}, v2 offset:{128 * i}')
    a('s_waitcnt lgkmcnt(0)')
    M, V = T + 8, T + 9
    a(f'v_add_f32 v{M}, v{X1}, v{X1 + 1}')
    for i in range(2, 9):
        a(f'v_add_f32 v{M}, v{M}, v{X1 + i}')
    wave_sum(a, M, T)
    a(f'v_mul_f32 v{M}, {f32(1 / 576.0)}, v{M}')
    for i in range(9):
        a(f'v_sub_f32 v{X1 + i}, v{X1 + i}, v{M}')
    a(f'v_mul_f32 v{V}, v{X1}, v{X1}')
    for i in range(1, 9):
        a(f'v_fmac_f32 v{V}, v{X1 + i}, v{X1 + i}')
    wave_sum(a, V, T)
    a(f'v_mov_b32 v{T}, {f32(EPS)}')
    a(f'v_fmamk_f32 v{V}, v{V}, {f32(1 / 576.0)}, v{T}')
    a(f'v_rsq_f32 v{V}, v{V}')
    for i in range(9):
        a(f'v_mul_f32 v{X1 + i}, v{X1 + i}, v{V}')

    def const2(T):
        NF, G4F, BA = T + 12, T + 13, T + 14
        a(f'v_cvt_f32_u32 v{NF}, v7')
        a(f'v_cvt_f32_u32 v{G4F}, v6')
        a(f'v_mul_f32 v{BA}, v{G4F}, v{NF}')
        a(f'v_mul_f32 v{BA}, {f32(4 / 64.0)}, v{BA}')
        a(f'v_mul_f32 v{BA}, {f32(64 / 2048.0)}, v{BA}')
        for bt in range(2):
            for i in range(4):
                a(f'v_fmamk_f32 v{T + i}, v{NF}, {f32((16 * bt + i) / 2048.0)}, v{BA}')
            for i in range(4):
                a(f'v_cos_f32 v{TW2C + 4 * bt + i}, v{T + i}')
                a(f'v_sin_f32 v{TW2S + 4 * bt + i}, v{T + i}')
        for et in range(2):
            a(f'v_add_u32 v{NF}, {16 * et}, v5')
            a(f'v_cvt_f32_u32 v{NF}, v{NF}')
            a(f'v_mul_f32 v{BA}, v{G4F}, v{NF}')
            a(f'v_mul_f32 v{BA}, {f32(4 / 32.0)}, v{BA}')
            gen_planar(a, NF, BA, 32, 2, GRE + 8 * et, GIM + 8 * et, T, lambda ks: (1, -1, 1))
    if TP:
        a('s_waitcnt vmcnt(2)')
        a(f's_cmp_lt_u32 s41, {NCRIT}')
        a('s_cselect_b32 s50, s3, 8')
        a('s_cmp_eq_u32 s50, 7')
        a('s_cbranch_scc1 f_b0')
        a('s_waitcnt vmcnt(1)')
        a('s_cmp_lt_u32 s50, 8')
        a('s_cbranch_scc1 f_b0')
        a('s_waitcnt vmcnt(0)')
        a.label('f_b0')
        a('s_waitcnt lgkmcnt(0)')
        a('s_barrier')
        a('s_cmp_lt_u32 s3, 3')
        a('s_cbranch_scc1 f_nozp2')
        a('s_cmp_eq_u32 s3, 7')
        a('s_cbranch_scc0 f_nopostb')
        a(f's_cmp_lt_u32 s2, {POI0}')
        a('s_cbranch_scc1 f_nopoi2')
        a('v_readfirstlane_b32 s50, v99')
        a('s_cmp_eq_u32 s50, 0')
        a('s_cbranch_scc0 f_tagok')
        announce(a, 'f_an2b', 50, 2, 99)
        a.label('f_tagok')
        a('s_lshl_b32 s50, s2, 6')
        a(f's_add_u32 s50, s50, {WS_PF - 64 * POI0}')
        a('s_mov_b64 exec, 1')
        vm('post', f'buffer_store_dword v99, off, {sq(SWS)}, s50 sc1', cond=True)
        a('s_mov_b64 exec, -1')
        k.mark('gv1')
        a.label('f_nopoi2')
        a(f's_sub_u32 s50, s41, {NCRIT}')
        a(f's_cmp_lt_u32 s50, {NTASK - NCRIT}')
        a('s_cbranch_scc0 f_nopostb')
        greduce()
        vm('mp', f'buffer_store_dword v{GACC}, v{A_L4}, {sq(SWS)}, s48 offen sc1', cond=True)
        a.label('f_nopostb')
        wt_work2()
        zpoison4()
        a(f's_cmp_lt_u32 s41, {NCRIT}')
        a('s_cbranch_scc0 f_c1done2')
        const1(C1P, 16)
        const1b()
        a.label('f_c1done2')
        if OPT.get('dblc'):
            a('s_cmp_eq_u32 s40, 0')
            a('s_cselect_b32 s50, -1, s42')
            a('s_cmp_eq_u32 s50, -1')
            a('s_cbranch_scc1 f_dblc')
            const2(T)
            if OPT['dblc'] == 2:
                const3(a, T)
            a.label('f_dblc')
    else:
        const2(T)
    PFV = 98

    def pf_loads():
        a('v_lshlrev_b32 v2, 6, v1')
        a(f'v_min_u32 v3, {(NPOI - 65) * 64}, v2')
        a(f's_mov_b32 s51, {WS_PF}')
        a(f's_mov_b32 s46, {WS_PF + 4096}')

    def pf_issue(sfx=' sc1'):
        a(f'buffer_load_dword v{PFV}, off, {sq(SDB)}, 0 offset:252' + sfx)
        a(f'buffer_load_dword v{PFV + 1}, v2, {sq(SWS)}, s51 offen' + sfx)
        a(f'buffer_load_dword v{PFV + 2}, v3, {sq(SWS)}, s46 offen' + sfx)
    if TP:
        k.mark('ln')
        if OPT.get('frsl'):
            a(f's_cmp_lt_u32 s41, {NCRIT}')
            a('s_cbranch_scc1 f_nosl0')
            a(f's_sleep {OPT["frsl"]}')
            a.label('f_nosl0')
        if OPT.get('crsl'):
            a(f's_sleep {OPT["crsl"]}')
        a('s_cmp_lt_u32 s3, 3')
        a('s_cbranch_scc0 f_staged')
        MQ = 28
        TA, TG, TB, TM = 64, 67, 68, T + 2
        a('v_mul_u32_u24 v2, 48, v0')
        for ks in range(3):
            a(f's_mov_b32 s{44 + ks}, {WS_CR + ks * CR_PLANE:#x}')
        a('v_cmp_lt_u32 vcc, 95, v0')
        a('v_cndmask_b32 v3, 0, 1.0, vcc')
        a('s_mov_b32 s47, 0xffff0000')
        a(f'v_lshrrev_b32 v{T + 6}, 9, v2')
        a(f'v_add_u32 v{T + 7}, 32, v2')
        a(f'v_lshrrev_b32 v{T + 7}, 9, v{T + 7}')
        a(f'v_add_u32 v{T + 8}, 16, v2')
        a(f'v_lshrrev_b32 v{T + 8}, 9, v{T + 8}')
        a(f'v_cmp_ne_u32 s[50:51], v{T + 8}, v{T + 6}')
        a(f'v_mul_u32_u24 v{T + 6}, 12, v{T + 6}')
        a(f'v_mul_u32_u24 v{T + 7}, 12, v{T + 7}')
        a('s_mov_b32 s43, 0')

        def cr_loads(s0, s1):
            a(f'buffer_load_dword v{TG}, off, {sq(SDB)}, 0 offset:252' + s0)
            a(f'buffer_load_dwordx3 v[{TA}:{TA + 2}], v{T + 6}, {sq(SDB)}, 0 offen' + s0)
            a(f'buffer_load_dwordx3 v[{TB}:{TB + 2}], v{T + 7}, {sq(SDB)}, 0 offen' + s0)
            for ks in range(3):
                for h in range(3):
                    r = MQ + 12 * ks + 4 * h
                    a(f'buffer_load_dwordx4 v[{r}:{r + 3}], v2, {sq(SWS)}, s{44 + ks} offen offset:{16 * h}' + s1)
        if OPT.get('crp'):
            cr_loads('' if OPT['crp'] & 2 else ' sc1', '' if OPT['crp'] & 1 else ' sc1')
            a('s_branch f_mp_chk')
        a.label('f_mp')
        cr_loads(' sc1', ' sc1')
        a.label('f_mp_chk')
        a('s_add_u32 s43, s43, 1')
        a('s_waitcnt vmcnt(9)')
        for ks in range(3):
            a(f'v_cndmask_b32 v{TM + ks}, v{TA + ks}, v{TB + ks}, s[50:51]')
        a(f'v_min3_u32 v{T}, v{TA}, v{TA + 1}, v{TA + 2}')
        a(f'v_min3_u32 v{T + 1}, v{TB}, v{TB + 1}, v{TB + 2}')
        a(f'v_min3_u32 v{T}, v{T}, v{T + 1}, v{TG}')
        a(f'v_cmp_eq_u32 s[58:59], 0, v{T}')
        for ks in range(3):
            a(f's_waitcnt vmcnt({6 - 3 * ks})')
            for i in range(6):
                r = MQ + 12 * ks + 2 * i + 1
                tg = (TA, TM, TB)[i // 2] + ks
                if ks == 0 and i < 2:
                    a(f'v_xor_b32 v{T + i}, v{r}, v{tg}')
                else:
                    a(f'v_bitop3_b32 v{T + i % 2}, v{r}, v{tg}, v{T + i % 2} bitop3:0xbe')
        a(f'v_or_b32 v{T}, v{T}, v{T + 1}')
        a(f'v_cmp_ne_u32 vcc, 0, v{T}')
        a('s_or_b64 exec, vcc, s[58:59]')
        a('s_cbranch_scc0 f_mp_ok')
        if OPT.get('mpsl'):
            a(f's_sleep {OPT["mpsl"]}')
        a(f's_cmp_lt_u32 s43, {POLL_MAX}')
        a('s_cbranch_scc1 f_mp')
        a.label('f_mp_ok')
        a('s_mov_b64 exec, -1')
        k.mark('st1')
        a('s_mov_b32 s50, s43')
        a(f'v_readfirstlane_b32 s26, v{TG}')
        a('v_lshrrev_b32 v2, 1, v2')
        SV = T + 2
        for i in range(6):
            a(f'v_add_f32 v{SV + i}, v{MQ + 2 * i}, v{MQ + 12 + 2 * i}')
        for i in range(6):
            a(f'v_add_f32 v{SV + i}, v{SV + i}, v{MQ + 24 + 2 * i}')
        round_list(a, [SV + i for i in range(6)], T, 47)
        for i in range(6):
            a(f'v_add_f32 v{SV + i}, v{SV + i}, v3')
        round_list(a, [SV + i for i in range(6)], T, 47)
        for i in range(3):
            a(f'ds_write_b64 v2, v[{SV + 2 * i}:{SV + 2 * i + 1}] offset:{L_SC + 8 * i}')
    else:
        k.mark('ln')
        a('s_cmp_lt_u32 s3, 3')
        a('s_cbranch_scc1 f_stage')
        k.mark('st0')
        const3(a, T)
        a('s_cmp_eq_u32 s3, 3')
        a('s_cbranch_scc0 f_nofp')
        if OPT.get('frsl'):
            a('s_cmp_ge_u32 s2, 226')
            a('s_cbranch_scc0 f_nosl3')
            a(f's_sleep {OPT["frsl"]}')
            a.label('f_nosl3')
        announce(a, 'f_an4', 50, 2, 3, FZ)
        a('v_lshlrev_b32 v2, 6, v1')
        a(f'v_min_u32 v3, {(NPOI - 129) * 64}, v2')
        a(f's_mov_b32 s51, {WS_PF}')
        a(f's_mov_b32 s47, {WS_PF + 4096}')
        a(f's_mov_b32 s46, {WS_PF + 8192}')
        poll(a, 'f_pf', [f'buffer_load_dword v{WM}, v2, {sq(SWS)}, s51 offen sc1', f'buffer_load_dword v{WM + 1}, v2, {sq(SWS)}, s47 offen sc1',
                         f'buffer_load_dword v{WM + 2}, v3, {sq(SWS)}, s46 offen sc1'], [WM, WM + 1, WM + 2], WM + 3, 50)
        a.label('f_nofp')
        if OPT.get('stw'):
            a('s_waitcnt vmcnt(0)')
        k.mark('st1')
        a('s_branch f_staged')
        a.label('f_stage')
        a('s_waitcnt vmcnt(0)')
        k.mark('st0')
        if OPT.get('frsl'):
            a('s_cmp_ge_u32 s2, 226')
            a('s_cbranch_scc0 f_nosl0')
            a(f's_sleep {OPT["frsl"]}')
            a.label('f_nosl0')
        announce(a, 'f_an3', 50, 2, 3, FZ)
        k.mark('st1')
        a('v_mul_u32_u24 v2, 24, v0')
        for ks in range(3):
            a(f's_mov_b32 s{44 + ks}, {WS_CR + ks * CR_PLANE:#x}')
        a('v_cmp_lt_u32 vcc, 95, v0')
        a('v_cndmask_b32 v3, 0, 1.0, vcc')
        a('s_mov_b32 s47, 0xffff0000')
        lds_ = []
        for ks in range(3):
            lds_.append(f'buffer_load_dwordx4 v[{MS + 6 * ks}:{MS + 6 * ks + 3}], v2, {sq(SWS)}, s{44 + ks} offen sc1')
            lds_.append(f'buffer_load_dwordx2 v[{MS + 6 * ks + 4}:{MS + 6 * ks + 5}], v2, {sq(SWS)}, s{44 + ks} offen offset:16 sc1')
        poll(a, 'f_mp', lds_, range(MS, MS + 18), T, 50)
        for i in range(0, 6, 2):
            pk(a, 'add', MS + i, MS + i, MS + 6 + i)
        for i in range(0, 6, 2):
            pk(a, 'add', MS + i, MS + i, MS + 12 + i)
        round_list(a, [MS + i for i in range(6)], T, 47)
        for i in range(6):
            a(f'v_add_f32 v{MS + i}, v{MS + i}, v3')
        round_list(a, [MS + i for i in range(6)], T, 47)
        for i in range(3):
            a(f'ds_write_b64 v2, v[{MS + 2 * i}:{MS + 2 * i + 1}] offset:{L_SC + 8 * i}')
    a.label('f_staged')
    k.mark('staged')
    if FZ:
        for sb, off, sz in ((SWR, K_W2, SZ_W), (SWI, K_B2, S * 2), (SC_, K_OUT, SZ_X), (SWM, K_B1, F * 2)):
            a(f's_load_dwordx2 s[{sb}:{sb + 1}], s[0:1], {off}')
            a(f's_mov_b32 s{sb + 2}, {sz:#x}')
    a('s_waitcnt lgkmcnt(0)')
    a('s_barrier')
    k.mark('p1go')
    if TP:
        a('s_cmp_eq_u32 s3, 3')
        a('s_cbranch_scc0 f_nofp')
        pf_loads()
        pf_issue('' if OPT.get('pfp') else ' sc1')
        a.label('f_nofp')
    SA = 28
    CA = SA + 9
    for p in (4, 5, 6, 7, 8, 0, 1, 2, 3):
        a(f'ds_read2st64_b32 v[{SA + 2 * p}:{SA + 2 * p + 1}], v{A_L4} offset0:{L_SC // 256 + 2 * p} offset1:{L_SC // 256 + 2 * p + 1}')
    for i in range(9):
        if i % 2 == 0 and i < 8:
            a(f's_waitcnt lgkmcnt({3 - i // 2})')
        a(f'v_fma_f32 v{X1 + i}, v{X1 + i}, v{CA + i}, v{SA + i}')
    P, Q = 48, 52
    for j in range(1, 5):
        a(f'v_add_f32 v{P + j - 1}, v{X1 + j}, v{X1 + 9 - j}')
        a(f'v_sub_f32 v{Q + j - 1}, v{X1 + j}, v{X1 + 9 - j}')
    RE, IM, R0 = 56, 60, 64
    a(f'v_add_f32 v{R0}, v{X1}, v{P}')
    a(f'v_add_f32 v{R0 + 1}, v{P + 1}, v{P + 2}')
    a(f'v_add_f32 v{R0}, v{R0}, v{P + 3}')
    a(f'v_add_f32 v{R0}, v{R0}, v{R0 + 1}')
    for j in range(1, 5):
        for k1 in range(1, 5):
            src = X1 if j == 1 else RE + k1 - 1
            a(f'v_fmamk_f32 v{RE + k1 - 1}, v{P + j - 1}, {f32(C9[(j * k1) % 9])}, v{src}')
    started = set()
    for j in range(1, 5):
        for k1 in range(1, 5):
            sv = -S9[(j * k1) % 9]
            if abs(sv) < 1e-9:
                continue
            if k1 not in started:
                a(f'v_mul_f32 v{IM + k1 - 1}, {f32(sv)}, v{Q + j - 1}')
                started.add(k1)
            else:
                a(f'v_fmamk_f32 v{IM + k1 - 1}, v{Q + j - 1}, {f32(sv)}, v{IM + k1 - 1}')
    a(f'v_cvt_pk_bf16_f32 v{R0}, v{R0}, 0')
    a(f'ds_write_b32 v{A_T1W}, v{R0}')
    TR, TI = 68, 72
    cmul4(a, RE, IM, TW1, TW1 + 4, TR, TI, 'conj')
    for k1 in range(1, 5):
        a(f'v_cvt_pk_bf16_f32 v{X1 + k1}, v{TR + k1 - 1}, v{TI + k1 - 1}')
        a(f'ds_write_b32 v{A_T1W}, v{X1 + k1} offset:{8 * k1 * T1S}')
    a('s_cmp_lt_u32 s39, 2')
    a('s_cselect_b32 s47, 0, 0x80000000')
    a('s_waitcnt vmcnt(0) lgkmcnt(0)')
    if TP:
        a('s_cmp_eq_u32 s3, 3')
        a('s_cbranch_scc0 f_pf_ok')
        a('s_mov_b32 s50, 0')
        a.label('f_pf')
        a(f'v_xor_b32 v{PFV + 1}, v{PFV + 1}, v{PFV}')
        a(f'v_bitop3_b32 v{PFV + 1}, v{PFV + 2}, v{PFV}, v{PFV + 1} bitop3:0xbe')
        a(f'v_cmp_eq_u32 s[58:59], 0, v{PFV}')
        a(f'v_cmp_ne_u32 vcc, 0, v{PFV + 1}')
        a('s_or_b64 vcc, vcc, s[58:59]')
        a('s_cbranch_scc0 f_pf_got')
        a(f's_cmp_lt_u32 s50, {POLL_MAX}')
        a('s_cbranch_scc0 f_pf_got')
        pf_loads()
        pf_issue()
        a('s_add_u32 s50, s50, 1')
        a('s_waitcnt vmcnt(0)')
        a('s_branch f_pf')
        a.label('f_pf_got')
        a(f'v_readfirstlane_b32 s26, v{PFV}')
        a.label('f_pf_ok')
        k.markv('st0', 50)
    a('s_barrier')
    AF, ACC, TO = 28, 60, 76
    for ks in range(4):
        a(f'ds_read_b128 v[{AF + 4 * ks}:{AF + 4 * ks + 3}], v{A_T1R} offset:{64 * ks}')
    a('s_cmp_eq_u32 s40, 1')
    a('s_cbranch_scc1 f_p1_one')
    for ks in range(4):
        a(f'ds_read_b128 v[{AF + 16 + 4 * ks}:{AF + 16 + 4 * ks + 3}], v{A_T1R} offset:{16 * T1S + 64 * ks}')

    def p1_tile(tau, waits):
        for ks in range(4):
            if waits is not None:
                a(f's_waitcnt lgkmcnt({waits - ks})')
            for h, FB in enumerate((FRE, FIM)):
                acc = ACC + 8 * tau + 4 * h
                c = '0' if ks == 0 else f'v[{acc}:{acc + 3}]'
                af = AF + 16 * tau + 4 * ks
                a(f'v_mfma_f32_16x16x32_bf16 v[{acc}:{acc + 3}], v[{af}:{af + 3}], v[{FB + 4 * ks}:{FB + 4 * ks + 3}], {c}')

    def p1_out(tau):
        o = TO + 4 * tau
        for i in range(4):
            a(f'v_cvt_pk_bf16_f32 v{o + i}, v{ACC + 8 * tau + i}, v{ACC + 8 * tau + 4 + i}')
        for i in range(4):
            a(f'v_xor_b32 v{o + i}, s47, v{o + i}')
        a(f'buffer_store_dwordx4 v[{o}:{o + 3}], v{(A_HB0, A_HB1)[tau]}, {sq(SWS)}, s56 offen sc1')
    p1_tile(0, 7)
    p1_tile(1, 3)
    p1_out(0)
    p1_out(1)
    a('s_branch f_p1_join')
    a.label('f_p1_one')
    p1_tile(0, 3)
    p1_out(0)
    if OPT.get('t1l'):
        a(f's_sub_u32 s50, s37, {TY0}')
        a('s_cbranch_scc1 f_p1_join')
        a('s_lshl_b32 s50, s50, 2')
        a('s_add_u32 s50, s50, s39')
        touches(a, vm, 't1', 4 * (32 - TY0), 50)
    a.label('f_p1_join')
    k.mark('hbst')
    if TP:
        flzero()
        h2poison(28)
        a('s_cmp_eq_u32 s42, -1')
        a('s_cbranch_scc1 f_c3now')
        if OPT.get('dblc'):
            a('s_cmp_eq_u32 s40, 0')
            a('s_cbranch_scc0 f_c3done')
        const2(84)
        a('s_branch f_c3done')
        a.label('f_c3now')
    else:
        a('s_cmp_lt_u32 s3, 3')
        a('s_cbranch_scc0 f_c3done')
    const3(a, 84)
    a.label('f_c3done')
    if FZ:
        k_tail.g1_ids(a)
    a('s_cmp_eq_u32 s42, -1')
    a('s_cbranch_scc1 f_p2_idle')
    a('s_and_b32 s50, s39, 1')
    a('s_lshl_b32 s50, s50, 4')
    a('s_lshr_b32 s51, s39, 1')
    a('s_add_u32 s50, s50, s51')
    a(f's_mul_i32 s50, s50, {8 * PITCH}')
    a('s_lshl_b32 s51, s42, 5')
    a('s_add_u32 s50, s50, s51')
    a(f's_add_u32 s44, s50, {WS_HB}')
    a(f's_add_u32 s45, s44, {64 * PITCH}')
    a('s_lshl_b32 s50, s3, 11')
    a(f's_add_u32 s50, s50, {L_A2}')
    a(f'v_add_u32 v2, s50, v{A_L16}')
    a('s_lshl_b32 s50, s40, 13')
    a(f's_add_u32 s50, s50, {L_A2}')
    a(f'v_add_u32 v3, s50, v{A_L16}')
    a('s_lshr_b32 s50, s42, 6')
    a('s_and_b32 s51, s42, 63')
    a('s_mul_i32 s46, s51, 9')
    a('s_add_u32 s46, s46, s50')
    a('s_sub_u32 s50, 576, s46')
    a('s_cmp_lt_u32 s51, 32')
    a('s_cselect_b32 s46, s46, s50')
    if TP:
        a('s_lshl_b32 s46, s46, 5')
        a(f's_mul_i32 s50, s39, {2 * WT_PITCH}')
        a('s_add_u32 s46, s46, s50')
        a(f's_add_u32 s46, s46, {WS_WT}')
        a(f's_add_u32 s51, s46, {32 * WT_PITCH}')
        a('v_bfe_u32 v4, v1, 3, 1')
        a('v_lshl_add_u32 v4, v6, 3, v4')
        a('v_bfe_u32 v84, v1, 1, 2')
        a('v_lshl_add_u32 v4, v84, 6, v4')
        a(f'v_mul_u32_u24 v4, {WT_PITCH}, v4')
        a('v_and_b32 v84, 1, v1')
        a('v_lshl_add_u32 v4, v84, 4, v4')
    else:
        a('s_lshl_b32 s46, s46, 13')
        a('s_lshl_b32 s50, s39, 11')
        a('s_add_u32 s46, s46, s50')
        a(f's_add_u32 s46, s46, {WS_WT}')
    a('s_lshl_b32 s48, s42, 13')
    a(f's_add_u32 s48, s48, {WS_ZB}')
    a('s_mov_b32 s47, 0xffff0000')
    a('s_waitcnt vmcnt(0)')
    AF, ACC, BF, T, WV = 28, 60, 76, 84, 96
    lds_ = [f'buffer_load_dwordx4 v[{AF + 4 * h}:{AF + 4 * h + 3}], v{A_P2LD}, {sq(SWS)}, s{44 + h} offen sc1' for h in range(2)]
    if OPT.get('xwte'):
        for et in range(2):
            a(f'buffer_load_dwordx4 v[{WV + 4 * et}:{WV + 4 * et + 3}], v4, {sq(SWS)}, s{(46, 51)[et]} offen sc1')
    poll(a, 'f_hb', lds_, range(AF, AF + 8), T, 50, OPT.get('hrs', 0), OPT.get('hbp', 0))
    for et in range(2):
        if OPT.get('xwte'):
            continue
        if TP:
            a(f'buffer_load_dwordx4 v[{WV + 4 * et}:{WV + 4 * et + 3}], v4, {sq(SWS)}, s{(46, 51)[et]} offen' + ('' if OPT.get('wtp') else ' sc1'))
        else:
            a(f'buffer_load_dwordx4 v[{WV + 4 * et}:{WV + 4 * et + 3}], v{A_L16}, {sq(SWS)}, s46 offen offset:{1024 * et} sc1')
    for h in range(2):
        a(f'ds_write_b128 v2, v[{AF + 4 * h}:{AF + 4 * h + 3}] offset:{1024 * h}')
    k.mark('hbok')
    a('s_waitcnt lgkmcnt(0)')
    a('s_barrier')
    xrow('x3', L_X3, 49)
    for ks in range(4):
        for bt in range(2):
            af = AF + 4 * (bt * 4 + ks)
            a(f'ds_read_b128 v[{af}:{af + 3}], v3 offset:{1024 * (bt * 4 + ks)}')

    def stage64(waits):
        for ks in range(4):
            for bt in range(2):
                if waits:
                    a(f's_waitcnt lgkmcnt({7 - 2 * ks - bt})')
                for h, FB in enumerate((FRE, FIM)):
                    acc = ACC + 8 * bt + 4 * h
                    c = '0' if ks == 0 else f'v[{acc}:{acc + 3}]'
                    af = AF + 4 * (bt * 4 + ks)
                    a(f'v_mfma_f32_16x16x32_bf16 v[{acc}:{acc + 3}], v[{af}:{af + 3}], v[{FB + 4 * ks}:{FB + 4 * ks + 3}], {c}')

    def stage32():
        for kb in range(2):
            for mt in range(2):
                for h, GB in enumerate((GRE, GIM)):
                    acc = ACC + 8 * mt + 4 * h
                    c = '0' if kb == 0 else f'v[{acc}:{acc + 3}]'
                    g = GB + 4 * (mt * 2 + kb)
                    a(f'v_mfma_f32_16x16x32_bf16 v[{acc}:{acc + 3}], v[{g}:{g + 3}], v[{BF + 4 * kb}:{BF + 4 * kb + 3}], {c}')

    def pack_planar(tl):
        b = BF + 4 * tl
        for x in range(4):
            a(f'v_cvt_pk_bf16_f32 v{b + x}, v{T + 2 * x}, v{T + 2 * x + 1}')

    stage64(True)
    for bt in range(2):
        cmul4(a, ACC + 8 * bt, ACC + 8 * bt + 4, TW2C + 4 * bt, TW2S + 4 * bt, T, T + 4, 'conj')
        pack_planar(bt)
    stage32()
    a('s_waitcnt vmcnt(2)')
    WRS, WIS = AF, AF + 8
    for r in range(8):
        a(f'v_lshlrev_b32 v{WRS + r}, 16, v{WV + r}')
        a(f'v_and_b32 v{WIS + r}, s47, v{WV + r}')
    for et in range(2):
        cmul4(a, ACC + 8 * et, ACC + 8 * et + 4, WRS + 4 * et, WIS + 4 * et, T, T + 4, 'mulc')
        pack_planar(et)
    stage32()
    for bt in range(2):
        cmul4(a, ACC + 8 * bt, ACC + 8 * bt + 4, TW2C + 4 * bt, TW2S + 4 * bt, T, T + 4, 'conj')
        for i in range(4):
            a(f'v_cvt_pk_bf16_f32 v{T + 8 + i}, v{T + i}, v{T + 4 + i}')
            a(f'ds_write_b32 v{A_GW}, v{T + 8 + i} offset:{(16 * bt + i) * T1S}')
    a('s_waitcnt lgkmcnt(0)')
    a('s_barrier')
    for ks in range(4):
        for bt in range(2):
            af = AF + 4 * (bt * 4 + ks)
            a(f'ds_read_b128 v[{af}:{af + 3}], v{A_GR} offset:{16 * bt * T1S + 64 * ks}')
    stage64(True)
    for bt in range(2):
        acc = ACC + 8 * bt
        o = T + 4 * bt
        for x in range(4):
            a(f'v_cvt_pk_bf16_f32 v{o + x}, v{acc + 2 * x}, v{acc + 2 * x + 1}')
        if bt:
            a('s_add_u32 s48, s48, 4096')
        a(f'buffer_store_dwordx4 v[{o}:{o + 3}], v{A_ZST}, {sq(SWS)}, s48 offen sc1')
    a('s_branch f_p2_done')
    a.label('f_p2_idle')
    if TP:
        a('s_waitcnt vmcnt(0)')
    if FZ and OPT.get('upsite', 1) == 0:
        k_tail.late_poison(a)
    a('s_barrier')
    xrow('x3', L_X3, 49)
    if FZ and OPT.get('upsite', 1) == 1:
        k_tail.late_poison(a)
    if FZ and not OPT.get('t2first'):
        k_tail.g1_preload(a, OPT.get('npa', 2), 'f_pla')
    if OPT.get('t2l'):
        a(f's_sub_u32 s50, s37, {TY0}')
        a('s_cbranch_scc1 f_not2')
        a('s_lshl_b32 s50, s50, 2')
        a('s_add_u32 s50, s50, s39')
        touches(a, vm, 't2', 4 * (32 - TY0), 50)
        a.label('f_not2')
    if FZ and OPT.get('t2first'):
        k_tail.g1_preload(a, OPT.get('npa', 2), 'f_pla')
    if FZ and OPT.get('upsite', 1) == 2:
        k_tail.late_poison(a)
    a('s_barrier')
    if FZ and OPT.get('upsite', 1) == 3:
        k_tail.late_poison(a)
    a.label('f_p2_done')
    k.mark('zst')
    MR, ZV, T = 28, 40, 48
    for ks in range(3):
        a(f's_mov_b32 s{44 + ks}, {WS_MR + ks * MR_PLANE:#x}')
    for ks in range(3):
        a(f'buffer_load_dwordx4 v[{MR + 4 * ks}:{MR + 4 * ks + 3}], v{A_MR}, {sq(SWS)}, s{44 + ks} offen')
    a('s_bfe_u32 s50, s38, 0x10001')
    a('s_lshl_b32 s50, s50, 6')
    a('s_lshr_b32 s51, s38, 2')
    a('s_add_u32 s50, s50, s51')
    a('s_lshl_b32 s50, s50, 1')
    a('s_and_b32 s51, s38, 1')
    a('s_add_u32 s50, s50, s51')
    a('s_lshl_b32 s50, s50, 5')
    a(f's_add_u32 s48, s50, {WS_ZB}')
    a('v_subrev_u32 v2, 288, v0')
    a('v_cmp_gt_u32 vcc, 144, v2')
    a('v_cndmask_b32 v3, 0, 1.0, vcc')
    a('v_lshlrev_b32 v2, 4, v0')
    a('s_mov_b32 s47, 0xffff0000')
    if TP:
        if OPT.get('dblc') == 2:
            a('s_cmp_eq_u32 s40, 1')
        else:
            a('s_cmp_eq_u32 s42, -1')
        a('s_cbranch_scc1 f_c3late')
        const3(a, 60)
        a.label('f_c3late')
    a('s_waitcnt vmcnt(0)')
    for i in range(0, 4, 2):
        pk(a, 'add', MR + i, MR + i, MR + 4 + i)
    for i in range(0, 4, 2):
        pk(a, 'add', MR + i, MR + i, MR + 8 + i)
    round_list(a, [MR + i for i in range(4)], T, 47)
    for i in range(4):
        a(f'v_add_f32 v{MR + i}, v{MR + i}, v3')
    round_list(a, [MR + i for i in range(4)], T, 47)
    a(f'ds_write_b128 v2, v[{MR}:{MR + 3}] offset:{L_MR}')
    a('s_cmp_ge_u32 s2, 254')
    a('s_cselect_b32 s50, s3, 0')
    a('s_cmp_ge_u32 s50, 6')
    a('s_cbranch_scc0 f_nogb')
    a('v_subrev_u32 v2, 432, v0')
    a('v_cmp_gt_u32 vcc, 72, v2')
    a('v_mov_b32 v3, 0x7f000000')
    a(f'v_cndmask_b32 v2, v3, v{A_MR}, vcc')
    a(f's_movk_i32 s50, {WS_MOD + 4608}')
    a(f'buffer_store_dwordx4 v[{MR}:{MR + 3}], v2, {sq(SWS)}, s50 offen' + SC1)
    a('s_waitcnt vmcnt(0)')
    a.label('f_nogb')
    l0 = f'buffer_load_dwordx4 v[{ZV}:{ZV + 3}], v{A_ZLD0}, {sq(SWS)}, s48 offen sc1'
    l1 = f'buffer_load_dwordx4 v[{ZV + 4}:{ZV + 7}], v{A_ZLD1}, {sq(SWS)}, s48 offen sc1'
    if OPT.get('zsl'):
        a('s_cmp_lt_u32 s2, 33')
        a('s_cbranch_scc1 f_nozsl')
        a(f's_sleep {OPT["zsl"]}')
        if OPT.get('zsl4'):
            a('s_cmp_lt_u32 s3, 4')
            a('s_cbranch_scc1 f_nozsl')
            a(f's_sleep {OPT["zsl4"]}')
        a.label('f_nozsl')
    a('s_cmp_lt_u32 s3, 2')
    a('s_cbranch_scc1 f_z2')
    poll(a, 'f_za', [l0], range(ZV, ZV + 4), T, 50, OPT.get('zrs', 0), OPT.get('zp1', 0))
    a('s_branch f_zj')
    a.label('f_z2')
    poll(a, 'f_zb', [l0, l1], range(ZV, ZV + 8), T, 50, OPT.get('zrs', 0), OPT.get('zp1', 0))
    a(f'ds_write_b64 v{A_ZW}, v[{ZV + 4}:{ZV + 5}] offset:{4 * 576}')
    a(f'ds_write_b64 v{A_ZW}, v[{ZV + 6}:{ZV + 7}] offset:{4 * 576 + P3_PLANE}')
    a.label('f_zj')
    if FZ:
        k_tail.bias_early(a)
    a(f'ds_write_b64 v{A_ZW}, v[{ZV}:{ZV + 1}]')
    a(f'ds_write_b64 v{A_ZW}, v[{ZV + 2}:{ZV + 3}] offset:{P3_PLANE}')
    k.mark('zok')

    npa = OPT.get('npa', 2)
    cnt = {OPT.get('pls', 0): k_tail.NPRE - npa}
    if any(f'pn{i}' in OPT for i in range(5)):
        cnt = {i: OPT.get(f'pn{i}', 0) for i in range(5)}
        assert sum(cnt.values()) == k_tail.NPRE - npa

    def preload(site, guard=True):
        s1, s2 = cnt.get(site, 0), OPT.get('pls2', OPT.get('pls', 0)) == site
        tt = OPT.get('t3s') == site
        if not FZ or not (s1 or s2 or tt):
            return
        if guard:
            a('s_cmp_lt_u32 s3, 4')
            a(f's_cbranch_scc1 f_plb_done{site}')
        if tt and OPT.get('t3first'):
            t3()
        if s2:
            a('s_cmp_lt_u32 s2, 33')
            a(f's_cbranch_scc0 f_plb{site}')
            k_tail.g1_preload(a, npa, f'f_plb0{site}')
            a.label(f'f_plb{site}')
        if s1:
            k_tail.g1_preload(a, s1, f'f_plb1{site}')
        if tt and not OPT.get('t3first'):
            t3()
        a.label(f'f_plb_done{site}')

    def t3():
        if OPT.get('t3l'):
            a('s_cmp_lt_u32 s3, 4')
            a('s_cbranch_scc1 f_not3')
            a(f's_sub_u32 s50, s37, {TY3}')
            a('s_cbranch_scc1 f_not3')
            a('s_lshl_b32 s50, s50, 2')
            a('s_add_u32 s50, s50, s39')
            touches(a, vm, 't3', 4 * (32 - TY3), 50)
            a.label('f_not3')
    late = OPT.get('t3late', 0)
    if 't3s' in OPT:
        late = 2 + 8
    preload(0)
    if not late & 2:
        t3()
    a('s_waitcnt lgkmcnt(0)')
    a('s_barrier')
    if late & 4:
        t3()
    preload(1)
    if late & 2 and not late & 12:
        t3()
    a('v_cmp_eq_u32 s[44:45], 1, v6')
    a('v_cmp_eq_u32 s[50:51], 2, v6')
    a('v_cmp_eq_u32 s[58:59], 3, v6')
    AM, AK, ACC, GA = 28, 44, 60, 72
    SB, CB = GA + 9, GA + 18
    for ks in range(4):
        for h in range(2):
            a(f'ds_read_b64_tr_b16 v[{AM + 4 * ks + 2 * h}:{AM + 4 * ks + 2 * h + 1}], v{A_TRM} offset:{h * P3_PLANE + 128 * ks}')
    for ks in range(4):
        for h in range(2):
            a(f'ds_read_b64_tr_b16 v[{AK + 4 * ks + 2 * h}:{AK + 4 * ks + 2 * h + 1}], v{A_TR0} offset:{h * P3_PLANE + 128 * ks}')
    for ks in range(4):
        a(f's_waitcnt lgkmcnt({14 - 2 * ks})')
        for h, FB in enumerate((F3RE, F3IM)):
            acc = ACC + 4 * h
            c = '0' if ks == 0 else f'v[{acc}:{acc + 3}]'
            a(f'v_mfma_f32_16x16x32_bf16 v[{acc}:{acc + 3}], v[{AM + 4 * ks}:{AM + 4 * ks + 3}], v[{FB + 4 * ks}:{FB + 4 * ks + 3}], {c}')
    acc = ACC + 8
    for ks in range(4):
        a(f's_waitcnt lgkmcnt({6 - 2 * ks})')
        c = '0' if ks == 0 else f'v[{acc}:{acc + 3}]'
        a(f'v_mfma_f32_16x16x32_bf16 v[{acc}:{acc + 3}], v[{AK + 4 * ks}:{AK + 4 * ks + 3}], v[{F3RE + 4 * ks}:{F3RE + 4 * ks + 3}], {c}')
    assert L_MR % 256 == 0
    for i in range(9):
        a(f'ds_read_u16_d16_hi v{X3 + i}, v{A_WT} offset:{128 * i}')
    for p in range(13):
        a(f'ds_read2st64_b32 v[{GA + 2 * p}:{GA + 2 * p + 1}], v{A_N4} offset0:{L_MR // 256 + 2 * p} offset1:{L_MR // 256 + 2 * p + 1}')
    a(f'ds_read_b32 v{GA + 26}, v{A_N4} offset:{L_MR + 26 * 256}')
    for h in range(2):
        r = ACC + 4 * h
        a(f'v_permlane32_swap_b32 v{r}, v{r + 2}')
        a(f'v_permlane32_swap_b32 v{r + 1}, v{r + 3}')
    for h in range(2):
        r = ACC + 4 * h
        a(f'v_permlane16_swap_b32 v{r}, v{r + 1}')
        a(f'v_permlane16_swap_b32 v{r + 2}, v{r + 3}')
    TR, TI, TZ = 28, 32, 36
    cmul4(a, ACC, ACC + 4, TW3C, TW3S, TR, TI, 'mul')
    a(f'v_cndmask_b32 v{TZ}, v{acc}, v{acc + 1}, s[44:45]')
    a(f'v_cndmask_b32 v{TZ}, v{TZ}, v{acc + 2}, s[50:51]')
    a(f'v_cndmask_b32 v{TZ}, v{TZ}, v{acc + 3}, s[58:59]')
    a(f'v_mul_f32 v{TZ}, {f32(1.0 / (S * D))}, v{TZ}')
    Y0, PP, QQ, T = 37, 40, 44, 48
    a(f'v_add_f32 v{Y0}, v{TZ}, v{TR}')
    a(f'v_add_f32 v{Y0 + 1}, v{TR + 1}, v{TR + 2}')
    a(f'v_add_f32 v{Y0}, v{Y0}, v{TR + 3}')
    a(f'v_add_f32 v{Y0}, v{Y0}, v{Y0 + 1}')
    for k1 in range(1, 5):
        for n in range(1, 5):
            src = TZ if k1 == 1 else PP + n - 1
            a(f'v_fmamk_f32 v{PP + n - 1}, v{TR + k1 - 1}, {f32(C9[(n * k1) % 9])}, v{src}')
    started = set()
    for k1 in range(1, 5):
        for n in range(1, 5):
            sv = S9[(n * k1) % 9]
            if abs(sv) < 1e-9:
                continue
            if n not in started:
                a(f'v_mul_f32 v{QQ + n - 1}, {f32(sv)}, v{TI + k1 - 1}')
                started.add(n)
            else:
                a(f'v_fmamk_f32 v{QQ + n - 1}, v{TI + k1 - 1}, {f32(sv)}, v{QQ + n - 1}')
    a('s_waitcnt lgkmcnt(9)')
    a(f'v_fmac_f32 v{X3}, v{Y0}, v{GA}')
    for n in range(1, 5):
        a(f'v_sub_f32 v{T + 2 * (n % 2)}, v{PP + n - 1}, v{QQ + n - 1}')
        a(f'v_add_f32 v{T + 2 * (n % 2) + 1}, v{PP + n - 1}, v{QQ + n - 1}')
        a(f'v_fmac_f32 v{X3 + n}, v{T + 2 * (n % 2)}, v{GA + n}')
        a(f'v_fmac_f32 v{X3 + 9 - n}, v{T + 2 * (n % 2) + 1}, v{GA + 9 - n}')
    PKX, XO = 60, 28
    for m in range(5):
        a(f'v_cvt_pk_bf16_f32 v{PKX + m}, v{X3 + 2 * m}, v{X3 + min(2 * m + 1, 8)}')
    for m in range(5):
        a(f'v_lshlrev_b32 v{X3 + 2 * m}, 16, v{PKX + m}')
        if m < 4:
            a(f'v_and_b32 v{X3 + 2 * m + 1}, s47, v{PKX + m}')
    if FZ:
        for i in range(9):
            op = 'ds_write_b16_d16_hi' if i % 2 else 'ds_write_b16'
            a(f'{op} v{A_WT}, v{PKX + i // 2} offset:{128 * i}')
        a(f's_add_u32 s52, s49, {WS_X1}')
        a(f's_add_u32 s50, s55, {L_X3}')
        a(f'v_add_u32 v2, s50, v{A_L16}')
    else:
        a(f's_add_u32 s52, s52, {WS_X1}')
        for i in range(9):
            op = 'buffer_store_short_d16_hi' if i % 2 else 'buffer_store_short'
            a(f'{op} v{PKX + i // 2}, v{A_X3}, {sq(SWS)}, s52 offen offset:{128 * i}')
    a('v_cmp_eq_u32 s[44:45], 0, v5')

    def stats(off):
        M, V = T + 8, T + 9
        a(f'v_add_f32 v{M}, v{X3}, v{X3 + 1}')
        a(f'v_mul_f32 v{V}, v{X3}, v{X3}')
        a(f'v_fmac_f32 v{V}, v{X3 + 1}, v{X3 + 1}')
        for i in range(2, 9):
            a(f'v_add_f32 v{M}, v{M}, v{X3 + i}')
            a(f'v_fmac_f32 v{V}, v{X3 + i}, v{X3 + i}')
        row16_sum(a, [M, V])
        a('s_mov_b64 exec, s[44:45]')
        a(f'ds_write_b64 v{A_STW}, v[{M}:{V}] offset:{off}')
        a('s_mov_b64 exec, -1')
        a('s_waitcnt lgkmcnt(0)')
        a('s_barrier')
        a(f'ds_read_b128 v[{T}:{T + 3}], v{A_STR} offset:{off}')
        a(f'ds_read_b128 v[{T + 4}:{T + 7}], v{A_STR} offset:{off + 16}')
        a(f'v_mov_b32 v{T + 10}, {f32(EPS)}')
        a('s_waitcnt lgkmcnt(0)')
        if FZ and off == 0:
            a('s_cmp_lt_u32 s3, 4')
            a('s_cbranch_scc0 f_nox1r')
            for h in range(4):
                a(f'ds_read_b128 v[{XO + 4 * h}:{XO + 4 * h + 3}], v2 offset:{1024 * (h % 2) + 4 * XROW * (h // 2)}')
            a.label('f_nox1r')
        pk(a, 'add', T, T, T + 2)
        pk(a, 'add', T + 4, T + 4, T + 6)
        pk(a, 'add', T, T, T + 4)
        a(f'v_mul_f32 v{M}, {f32(1 / 576.0)}, v{T}')
        a(f'v_fmamk_f32 v{V}, v{T + 1}, {f32(1 / 576.0)}, v{T + 10}')
        a(f'v_fma_f32 v{V}, -v{M}, v{M}, v{V}')
        a(f'v_rsq_f32 v{V}, v{V}')
        a(f'v_mul_f32 v{M}, -v{M}, v{V}')
        for i in range(9):
            a(f'v_fma_f32 v{X3 + i}, v{X3 + i}, v{V}, v{M}')

    k.mark('x1')
    stats(0)
    if FZ:
        preload(2)
        a('s_cmp_lt_u32 s3, 4')
        a('s_cbranch_scc0 f_nox1s')
        a('s_add_u32 s50, s52, 4608')
        a('s_waitcnt lgkmcnt(0)')
        a(f'buffer_store_dwordx4 v[{XO}:{XO + 3}], v{A_L16}, {sq(SWS)}, s52 offen sc1')
        a(f'buffer_store_dwordx4 v[{XO + 8}:{XO + 11}], v{A_L16}, {sq(SWS)}, s50 offen sc1')
        a('s_mov_b64 exec, 0xff')
        a(f'buffer_store_dwordx4 v[{XO + 4}:{XO + 7}], v{A_L16}, {sq(SWS)}, s52 offen offset:1024 sc1')
        a(f'buffer_store_dwordx4 v[{XO + 12}:{XO + 15}], v{A_L16}, {sq(SWS)}, s50 offen offset:1024 sc1')
        a('s_mov_b64 exec, -1')
        a.label('f_nox1s')
    for i in range(9):
        a(f'v_fma_f32 v{X3 + i}, v{X3 + i}, v{CB + i}, v{SB + i}')
    stats(256)
    a(f'v_mov_b32 v{X3 + 9}, 0')
    for m in range(5):
        a(f'v_permlane16_swap_b32 v{X3 + 2 * m}, v{X3 + 2 * m + 1}')
    PK = 28
    for m in range(5):
        a(f'v_cvt_pk_bf16_f32 v{PK + m}, v{X3 + 2 * m}, v{X3 + 2 * m + 1}')
    a(f'v_mov_b32 v{PK + 5}, 0')
    for m in range(0, 6, 2):
        a(f'v_permlane32_swap_b32 v{PK + m}, v{PK + m + 1}')
    a(f's_mul_i32 s50, s38, {k_tail.H2_BLK}')
    if FZ:
        a(f'ds_write_b64 v{A_H2A}, v[{PK}:{PK + 1}]')
        a(f'ds_write_b64 v{A_H2A}, v[{PK + 2}:{PK + 3}] offset:4096')
        a('s_mov_b64 exec, 0xffff')
        a(f'ds_write_b64 v{A_H2A}, v[{PK + 4}:{PK + 5}] offset:8192')
        a('s_mov_b64 exec, -1')
        a(f's_add_u32 s50, s50, {WS_H2}')
        a('v_lshlrev_b32 v2, 4, v0')
        a('v_add_u32 v3, 8192, v2')
        a(f'v_add_u32 v4, 8192, v{A_L16}')
        preload(4)
        a('s_waitcnt lgkmcnt(0)')
        a('s_barrier')
        preload(3)
        a('s_cmp_lt_u32 s3, 4')
        a('s_cbranch_scc0 f_h2none')
        a(f'ds_read_b128 v[{PK}:{PK + 3}], v2 offset:{L_Z3}')
        a(f'ds_read_b128 v[{PK + 4}:{PK + 7}], v3 offset:{L_Z3 - 4096}')
        a('s_cmp_eq_u32 s3, 1')
        a('s_cbranch_scc0 f_h2one')
        a(f'ds_read_b128 v[{PK + 8}:{PK + 11}], v4 offset:{L_Z3}')
        a('s_waitcnt lgkmcnt(0)')
        a(f'buffer_store_dwordx4 v[{PK + 8}:{PK + 11}], v{A_H2C}, {sq(SWS)}, s50 offen sc1')
        a.label('f_h2one')
        a('s_waitcnt lgkmcnt(1)')
        a(f'buffer_store_dwordx4 v[{PK}:{PK + 3}], v{A_H2B}, {sq(SWS)}, s50 offen sc1')
        a('s_waitcnt lgkmcnt(0)')
        a(f'buffer_store_dwordx4 v[{PK + 4}:{PK + 7}], v{A_X3}, {sq(SWS)}, s50 offen sc1')
        if OPT.get('hint1'):
            a(f's_cmp_eq_u32 s3, {OPT.get("hw1", 1)}')
            a('s_cbranch_scc0 f_nohint')
            a('v_mov_b32 v3, 1')
            a('s_lshl_b32 s50, s38, 10')
            a(f's_add_u32 s50, s50, {WS_FLG + k_tail.FL_H2}')
            a('s_mov_b64 exec, 1')
            a(f'buffer_store_dword v3, off, {sq(SWS)}, s50 offset:4 sc1')
            a('s_mov_b64 exec, -1')
            a.label('f_nohint')
        k.mark('h2st')
        a('s_waitcnt vmcnt(0)')
        if OPT.get('rm') and OPT.get('rsite', 0):
            a('s_branch f_h2done')
            a.label('f_h2none')
            a('s_cmp_lt_u32 s2, 216')
            a('s_cbranch_scc0 f_h2done')
            if OPT.get('rsl'):
                a(f's_sleep {OPT["rsl"]}')
            k_tail.g1_batch(a, 0, OPT.get('rsp', 4) if OPT['rsite'] == 2 else 99)
            a.label('f_h2done')
        elif OPT.get('hint1'):
            a('s_branch f_h2done')
            a.label('f_h2none')
            a('s_cmp_lt_u32 s2, 216')
            a('s_cbranch_scc0 f_h2done')
            if OPT.get('rsl'):
                a(f's_sleep {OPT["rsl"]}')
            k_tail.g1_gate(a)
            a.label('f_h2done')
        elif OPT.get('sp1') and OPT.get('spsite'):
            a('s_branch f_h2done')
            a.label('f_h2none')
            a('s_cmp_lt_u32 s2, 216')
            a('s_cbranch_scc0 f_h2done')
            if OPT.get('rsl'):
                a(f's_sleep {OPT["rsl"]}')
            k_tail.g1_first(a)
            a.label('f_h2done')
        elif k_tail.H2S:
            a('s_branch f_h2done')
            a.label('f_h2none')
            k_tail.h2_addr(a)
            a.label('f_h2done')
        else:
            a.label('f_h2none')
        k_tail.tail(k)
    else:
        a('s_lshl_b32 s51, s40, 3')
        a('s_add_u32 s50, s50, s51')
        a(f's_add_u32 s50, s50, {WS_H2}')
        for mm, r in enumerate((A_H2A, A_H2B, A_H2C)):
            a(f'buffer_store_dwordx2 v[{PK + 2 * mm}:{PK + 2 * mm + 1}], v{r}, {sq(SWS)}, s50 offen')
    k.stamp_end(len(k.sel))
    a.label('f_done')
    a('s_endpgm')
    a.label('f_end')
    return k
```

```python
from common import *

WTILE = 16384


def loader(a, name, nst, nstages, slot, pitch, act_bytes, gemm2):
    per_wave_act = act_bytes // 4
    a('v_and_b32 v1, 63, v0')
    a('v_lshrrev_b32 v2, 4, v1')
    a('v_and_b32 v3, 15, v1')
    a('v_lshlrev_b32 v4, 1, v2')
    a('v_xor_b32 v4, v4, v3')
    a('v_xor_b32 v5, 8, v4')
    a(f's_movk_i32 s22, {pitch}')
    a('v_mul_lo_u32 v2, v2, s22')
    a('v_lshl_add_u32 v4, v4, 4, v2')
    a('v_lshl_add_u32 v5, v5, 4, v2')
    a('v_lshlrev_b32 v6, 4, v1')
    a('s_sub_u32 s23, s3, 4')
    a(f's_mul_i32 s24, s23, {16 * pitch}')
    a('s_add_u32 s20, s20, s24')
    a(f's_mul_i32 s24, s23, {per_wave_act}')
    a('s_add_u32 s21, s21, s24')
    a('s_lshl_b32 s25, s23, 12')
    a(f's_add_u32 s26, s24, {WTILE}')
    a('s_mov_b32 s27, 0')
    nld = 4 + (5 if gemm2 else 3)

    def issue():
        if OPT.get('noload'):
            return
        a('s_add_u32 m0, s27, s25')
        for j in range(4):
            hi = (j & 1) if gemm2 else (j >> 1)
            so = 's20' if j == 0 else f's{27 + j}'
            if j:
                a(f's_add_u32 s{27 + j}, s20, {j * (4 * pitch - 1024)}')
            a(f'buffer_load_dwordx4 v{4 + hi}, s[8:11], {so} offen offset:{1024 * j}' + pol('p_w2' if gemm2 else 'p_w1') + ' lds')
        a('s_add_u32 m0, s27, s26')
        a(f's_add_u32 s20, s20, {64 * pitch}')
        if gemm2:
            a('s_mov_b64 exec, 0xffffffff')
            a('buffer_load_dwordx4 v6, s[12:15], s21 offen' + pol('p_u' if gemm2 else 'p_h2') + ' lds')
            a('s_mov_b64 exec, -1')
            for j in range(4):
                a(f'buffer_load_dwordx4 v6, s[12:15], s21 offen offset:{512 + 1024 * j}' + pol('p_u' if gemm2 else 'p_h2') + ' lds')
        else:
            for j in range(3):
                a(f'buffer_load_dwordx4 v6, s[12:15], s21 offen offset:{1024 * j}' + pol('p_u' if gemm2 else 'p_h2') + ' lds')
        a(f's_add_u32 s21, s21, {act_bytes}')
        a(f's_add_u32 s27, s27, {slot}')
        a(f's_cmp_eq_u32 s27, {slot * nst}')
        a('s_cselect_b32 s27, 0, s27')

    if OPT.get('nobar'):
        a('s_barrier')
        return
    for st in range(nst - 1):
        issue()
    a(f's_movk_i32 s31, {nstages - (nst - 1)}')
    a.label(name + '_ld_loop')
    a(f's_waitcnt vmcnt({(nst - 2) * nld})')
    a('s_barrier')
    issue()
    a('s_sub_u32 s31, s31, 1')
    a('s_cmp_lg_u32 s31, 0')
    a(f's_cbranch_scc1 {name}_ld_loop')
    for t in range(nst - 1):
        a(f's_waitcnt vmcnt({(nst - 2 - t) * nld})')
        a('s_barrier')


def interleave(a, mf, fillers, per_gap=None):
    fl = list(fillers)
    per_gap = per_gap or OPT.get('pergap', 2)
    for g, m in enumerate(mf):
        a(m)
        n = 0
        while fl and n < per_gap and fl[0][0] <= g:
            a(fl.pop(0)[1])
            n += 1
    for _, t in fl:
        a(t)


def consumer_loop(k, a, name, nst, nstages, slot, nw, nact, WA, AA, FA, FB, ACC, w_h_off, act_off, gemm2):
    CW = WA + 8
    CA = WA + 8 + nw

    def set_addr():
        return [f'v_add_u32 v{CW + m}, s27, v{WA + m}' for m in range(nw)] + \
               [f'v_add_u32 v{CA + i}, s27, v{r}' for i, r in enumerate(AA)]

    def adv():
        return [f's_add_u32 s27, s27, {slot}', f's_cmp_eq_u32 s27, {slot * nst}', 's_cselect_b32 s27, 0, s27']

    def reads(F, ks):
        if OPT.get('noread'):
            return []
        wr, ar_ = [], []
        for m in range(nw):
            wr.append([f'ds_read_b64_tr_b16 v[{F + 4 * m + 2 * h}:{F + 4 * m + 2 * h + 1}], v{CW + m} '
                       f'offset:{ks * 8192 + h * w_h_off}' for h in range(2)])
        for t in range(nact):
            ai, off = act_off(ks, t)
            r = F + 4 * nw + 4 * t
            ar_.append(f'ds_read_b128 v[{r}:{r + 3}], v{CA + ai} offset:{off}')
        return [ar_[0]] + [x for w in wr for x in w] + ar_[1:]

    def mfmas(F):
        out = []
        for t in range(nact):
            for m in range(nw):
                acc = ACC + 4 * (m * nact + t)
                wf = f'v[{F + 4 * m}:{F + 4 * m + 3}]'
                af = f'v[{F + 4 * nw + 4 * t}:{F + 4 * nw + 4 * t + 3}]'
                s0, s1 = (af, wf) if gemm2 else (wf, af)
                out.append(f'v_mfma_f32_16x16x32_bf16 v[{acc}:{acc + 3}], {s0}, {s1}, v[{acc}:{acc + 3}]')
        if OPT.get('nomfma'):
            out = ['s_nop 0'] * len(out)
        return out

    nm = nw * nact
    nrd = 2 * nw + nact
    assert nrd <= 15
    bar_gap = OPT.get('bargap', nm - 3)
    for r in range(4 * nw * nact):
        a(f'v_mov_b32 v{ACC + r}, 0')
    a('s_mov_b32 s27, 0')
    for t in set_addr():
        a(t)
    a(f's_movk_i32 s31, {nstages - 1}')
    a('s_barrier')
    k.stamp_mid(0)
    k.stamp_clk(3)
    for t in reads(FA, 0):
        a(t)
    a.label(name + '_mm_loop')
    a('s_waitcnt lgkmcnt(0)')
    fl = [(0, t) for t in reads(FB, 1)] + [(0, t) for t in adv() + set_addr()]
    fl += [(bar_gap, 's_waitcnt lgkmcnt(0)'), (bar_gap, 's_nop 0' if OPT.get('nobar') else 's_barrier')]
    interleave(a, mfmas(FA), fl)
    fl = [(0, t) for t in reads(FA, 0)] + [(0, 's_sub_u32 s31, s31, 1'), (0, 's_cmp_lg_u32 s31, 0')]
    interleave(a, mfmas(FB), fl)
    a(f's_cbranch_scc1 {name}_mm_loop')
    a('s_waitcnt lgkmcnt(0)')
    interleave(a, mfmas(FA), [(0, t) for t in reads(FB, 1)])
    a('s_waitcnt lgkmcnt(0)')
    interleave(a, mfmas(FB), [])
    k.stamp_mid(1)
    k.stamp_clk(4)


def w_addr_setup(a, WA, nw, first_tile_expr_sgpr, rowmul):
    a('v_lshrrev_b32 v2, 2, v5')
    a('v_and_b32 v3, 1, v6')
    a('v_lshl_add_u32 v3, v3, 2, v2')
    a(f'v_mad_u32_u24 v2, v6, {rowmul}, v2')
    a('v_lshlrev_b32 v2, 8, v2')
    a('v_and_b32 v4, 3, v1')
    a('v_lshl_add_u32 v2, v4, 3, v2')
    for m in range(nw):
        a(f'v_xor_b32 v4, s{first_tile_expr_sgpr + m}, v3')
        a(f'v_lshl_add_u32 v{WA + m}, v4, 5, v2')


G1_NST, G1_SLOT, G1_STAGES = 5, WTILE + 12288, 32


def build_g1(stamp=None):
    k = Kernel('g1_kernel', 256 if OPT.get('pfg1') else 216, 512, G1_NST * G1_SLOT, 144, stamp_id=stamp)
    a = k.a
    k.stamp_begin()
    a('s_cmp_ge_u32 s2, 216')
    a('s_cbranch_scc1 g1_pf')
    a(f's_load_dwordx2 s[4:5], s[0:1], {K_WS}')
    a(f's_load_dwordx4 s[16:19], s[0:1], {K_W1}')
    a('v_lshrrev_b32 v2, 6, v0')
    a('v_readfirstlane_b32 s3, v2')
    a('s_and_b32 s33, s2, 7')
    a('s_mul_i32 s33, s33, 27')
    a('s_lshr_b32 s34, s2, 3')
    a('s_add_u32 s33, s33, s34')
    a('s_mul_i32 s34, s33, 171')
    a('s_lshr_b32 s34, s34, 10')
    a('s_mul_i32 s35, s34, 6')
    a('s_sub_u32 s35, s33, s35')
    a('s_lshl_b32 s20, s34, 8')
    a(f's_mul_i32 s21, s35, {256 * 1536}')
    a('s_waitcnt lgkmcnt(0)')
    a('s_cmp_lt_u32 s3, 4')
    a('s_cbranch_scc1 g1_cons')
    if OPT.get('fake'):
        a('s_mov_b32 s20, 0')
        a('s_mov_b32 s21, 0')
    srd(a, 8, 16, 0, SZ_W)
    srd(a, 12, 4, WS_H2, SZ_X)
    loader(a, 'g1', G1_NST, G1_STAGES, G1_SLOT, F * 2, 12288, False)
    a('s_branch g1_done')
    a.label('g1_cons')
    srd(a, 8, 18, 0, F * 2)
    srd(a, 12, 4, WS_U, SZ_U)
    WA, AAR, BIAS, FA, FB, ACC = 8, 12, 24, 32, 60, 88
    a('v_and_b32 v1, 63, v0')
    a('v_and_b32 v5, 15, v1')
    a('v_lshrrev_b32 v6, 4, v1')
    a('s_and_b32 s36, s3, 1')
    a('s_lshr_b32 s37, s3, 1')
    a('s_lshl_b32 s38, s36, 7')
    a('s_add_u32 s38, s38, s20')
    a('v_lshlrev_b32 v7, 3, v6')
    for m in range(4):
        a(f'buffer_load_dwordx2 v[{BIAS + 2 * m}:{BIAS + 2 * m + 1}], v7, s[8:11], s38 offen offset:{32 * m}')
    if OPT.get('pfh'):
        srd(a, 56, 4, WS_H2, SZ_X)
        a('s_lshr_b32 s60, s2, 3')
        a('s_lshl_b32 s60, s60, 2')
        a('s_add_u32 s60, s60, s3')
        a('s_lshl_b32 s60, s60, 6')
        a('v_add_u32 v2, s60, v1')
        a('v_lshrrev_b32 v3, 10, v2')
        a('v_and_b32 v2, 1023, v2')
        a('s_mov_b32 s61, 393216')
        a('v_mul_lo_u32 v3, v3, s61')
        a('v_lshl_add_u32 v2, v2, 7, v3')
        for th in range(3):
            a(f's_mov_b32 s61, {th * 131072}')
            for o in ([0, 64] if OPT.get('t64') else [0]):
                a(f'buffer_load_dword v140, v2, s[56:59], s61 offen offset:{o}')
    for m in range(4):
        a(f's_lshl_b32 s{40 + m}, s36, 2')
        a(f's_add_u32 s{40 + m}, s{40 + m}, {m}')
    w_addr_setup(a, WA, 4, 40, 8)
    a('v_mul_u32_u24 v2, 1536, v6')
    a('v_lshl_add_u32 v2, v5, 4, v2')
    a('s_mul_i32 s38, s37, 768')
    a(f's_add_u32 s38, s38, {WTILE}')
    a(f'v_add_u32 v{AAR}, s38, v2')
    consumer_loop(k, a, 'g1', G1_NST, G1_STAGES, G1_SLOT, 4, 3, WA, [AAR], FA, FB, ACC, 1024,
                  lambda ks, t: (0, ks * 6144 + t * 256), False)
    a('s_mov_b32 s32, 0xffff0000')
    a('s_waitcnt vmcnt(0)')
    B = FA
    for m in range(4):
        for h in range(2):
            a(f'v_lshlrev_b32 v{B + 4 * m + 2 * h}, 16, v{BIAS + 2 * m + h}')
            a(f'v_and_b32 v{B + 4 * m + 2 * h + 1}, s32, v{BIAS + 2 * m + h}')
    a('v_lshlrev_b32 v7, 4, v1')
    a('s_mul_i32 s38, s35, 6')
    a('s_mul_i32 s39, s37, 3')
    a('s_add_u32 s38, s38, s39')
    a('s_lshl_b32 s39, s34, 2')
    a('s_lshl_b32 s40, s36, 1')
    a('s_add_u32 s39, s39, s40')
    a('s_mul_i32 s39, s39, 9')
    for t in range(3):
        a(f's_add_u32 s40, s38, {t}')
        a('s_mul_i32 s41, s40, 57')
        a('s_lshr_b32 s41, s41, 9')
        a(f's_mul_i32 s41, s41, {144 * 9 - 9}')
        a('s_add_u32 s40, s40, s41')
        a('s_add_u32 s40, s40, s39')
        a(f's_lshl_b32 s{44 + t}, s40, 10')
        a(f's_add_u32 s{48 + t}, s{44 + t}, 9216')
    C0 = -2.0 * math.sqrt(2.0 / math.pi) * LOG2E
    C1 = C0 * 0.044715
    a(f's_mov_b32 s53, {f32(C1)}')
    T = FB
    a(f'v_mov_b32 v{T + 8}, {f32(C0)}')
    for t in range(3):
        for p in range(2):
            o = FB + 12 + 4 * ((t * 2 + p) % 2)
            for mm in range(2):
                m = 2 * p + mm
                acc = ACC + 4 * (m * 3 + t)
                regs = [acc + i for i in range(4)]
                round_list(a, regs, T, 32)
                for i in range(4):
                    a(f'v_add_f32 v{acc + i}, v{acc + i}, v{B + 4 * m + i}')
                round_list(a, regs, T, 32)
                for i in range(4):
                    a(f'v_mul_f32 v{T + 4 + i}, v{acc + i}, v{acc + i}')
                for i in range(4):
                    a(f'v_fma_f32 v{T + 4 + i}, v{T + 4 + i}, s53, v{T + 8}')
                for i in range(4):
                    a(f'v_mul_f32 v{T + 4 + i}, v{T + 4 + i}, v{acc + i}')
                for i in range(4):
                    a(f'v_exp_f32 v{T + 4 + i}, v{T + 4 + i}')
                for i in range(4):
                    a(f'v_add_f32 v{T + 4 + i}, 1.0, v{T + 4 + i}')
                for i in range(4):
                    a(f'v_rcp_f32 v{T + 4 + i}, v{T + 4 + i}')
                for i in range(4):
                    a(f'v_mul_f32 v{acc + i}, v{acc + i}, v{T + 4 + i}')
                a(f'v_cvt_pk_bf16_f32 v{o + 2 * mm}, v{acc}, v{acc + 1}')
                a(f'v_cvt_pk_bf16_f32 v{o + 2 * mm + 1}, v{acc + 2}, v{acc + 3}')
            a(f'buffer_store_dwordx4 v[{o}:{o + 3}], v7, s[12:15], s{(44 if p == 0 else 48) + t} offen' + pol('p_st'))
    k.stamp_mid(2)
    k.stamp_end(5)
    a.label('g1_done')
    a('s_endpgm')
    a.label('g1_pf')
    if OPT.get('pfg1'):
        a('s_cmp_ge_u32 s2, 256')
        a('s_cbranch_scc1 g1_done')
        a('v_and_b32 v1, 63, v0')
        a('v_lshrrev_b32 v2, 6, v0')
        a('v_readfirstlane_b32 s4, v2')
        a('s_sub_u32 s5, s2, 216')
        a('s_lshr_b32 s5, s5, 3')
        a('s_lshl_b32 s5, s5, 3')
        a('s_add_u32 s5, s5, s4')
        a('s_and_b32 s3, s2, 7')
        pf_w2_body(a, 3, 5, 40, 8, 2, 4, depth=OPT.get('pfg1depth', 1))
    a('s_endpgm')
    return k


G2_NST, G2_SLOT, G2_STAGES = 4, WTILE + 18432, 18
PART_MSG = 3072
SZ_PART = 64 * 4 * 4 * 4 * PART_MSG
SZ_FLAGS = 64 * 4 * 4 * 64


def build_g2(stamp=None):
    k = Kernel('g2_kernel', 256, 512, G2_NST * G2_SLOT, 224, stamp_id=stamp)
    a = k.a
    k.stamp_begin()
    a('s_cmp_ge_u32 s2, 256')
    a('s_cbranch_scc1 g2_done')
    a(f's_load_dwordx2 s[4:5], s[0:1], {K_WS}')
    a(f's_load_dwordx4 s[16:19], s[0:1], {K_W2}')
    a(f's_load_dwordx2 s[6:7], s[0:1], {K_OUT}')
    a('v_lshrrev_b32 v2, 6, v0')
    a('v_readfirstlane_b32 s3, v2')
    a('s_and_b32 s33, s2, 7')
    a('s_lshr_b32 s34, s2, 3')
    a('s_lshr_b32 s35, s33, 1')
    a('s_and_b32 s36, s33, 1')
    a('s_lshl_b32 s36, s36, 3')
    a('s_lshr_b32 s37, s34, 2')
    a('s_add_u32 s36, s36, s37')
    a('s_and_b32 s37, s34, 3')
    a(f's_mul_i32 s20, s35, {1152 * 4096}')
    a('s_lshl_b32 s38, s36, 8')
    a('s_add_u32 s20, s20, s38')
    a('s_mul_i32 s21, s37, 144')
    a('s_mul_i32 s38, s35, 36')
    a('s_add_u32 s21, s21, s38')
    a('s_mul_i32 s21, s21, 9216')
    a('s_waitcnt lgkmcnt(0)')
    a('s_cmp_lt_u32 s3, 4')
    a('s_cbranch_scc1 g2_cons')
    if OPT.get('fake'):
        a('s_mov_b32 s20, 0')
        a('s_mov_b32 s21, 0')
    srd(a, 8, 16, 0, SZ_W)
    srd(a, 12, 4, WS_U, SZ_U)
    loader(a, 'g2', G2_NST, G2_STAGES, G2_SLOT, S * 2, 18432, True)
    a('s_branch g2_done')
    a.label('g2_cons')
    srd(a, 8, 18, 0, S * 2)
    srd(a, 12, 4, WS_MOD, SZ_MOD)
    srd(a, 56, 4, WS_X1, SZ_X)
    srd(a, 60, 6, 0, SZ_X)
    srd(a, 64, 4, WS_PART, SZ_PART)
    srd(a, 68, 4, WS_FLAGS, SZ_FLAGS)
    WA, AAR, FA, FB, ACC = 8, 10, 24, 68, 112
    X1R, GBR, B2R = 184, 194, 214
    a('v_and_b32 v1, 63, v0')
    a('v_and_b32 v5, 15, v1')
    a('v_lshrrev_b32 v6, 4, v1')
    if OPT.get('pfu'):
        srd(a, 72, 4, WS_U, SZ_U)
        srd(a, 76, 16, 0, SZ_W)
        a('s_lshl_b32 s40, s34, 2')
        a('s_add_u32 s40, s40, s3')
        a('s_lshl_b32 s40, s40, 6')
        a('v_add_u32 v2, s40, v1')
        a('v_lshrrev_b32 v3, 4, v2')
        a('v_lshlrev_b32 v3, 12, v3')
        a('v_and_b32 v4, 15, v2')
        a('v_lshl_add_u32 v3, v4, 7, v3')
        a('s_and_b32 s41, s33, 1')
        a('s_lshl_b32 s41, s41, 11')
        a(f's_mul_i32 s42, s35, {1152 * 4096}')
        a('s_add_u32 s41, s41, s42')
        a('v_lshrrev_b32 v4, 11, v2')
        a(f's_mov_b32 s42, {144 * 9216}')
        a('v_mul_lo_u32 v4, v4, s42')
        a('v_and_b32 v7, 2047, v2')
        a('v_lshl_add_u32 v4, v7, 7, v4')
        a(f's_mul_i32 s42, s35, {36 * 9216}')
        a(f's_add_u32 s43, s42, {2048 * 128}')
        a('v_cmp_gt_u32 vcc, 544, v7')
        a('v_mov_b32 v7, 0x7f000000')
        a('v_cndmask_b32 v7, v7, v4, vcc')
        a('v_cmp_gt_u32 vcc, 2048, v2')
        a('v_mov_b32 v22, 0x7f000000')
        a('v_cndmask_b32 v22, v22, v3, vcc')
        for o in ([0, 64] if OPT.get('t64') else [0]):
            a(f'buffer_load_dword v220, v4, s[72:75], s42 offen offset:{o}')
            a(f'buffer_load_dword v220, v3, s[76:79], s41 offen offset:{o}')
        a(f's_add_u32 s41, s41, {512 * 4096}')
        for o in ([0, 64] if OPT.get('t64') else [0]):
            a(f'buffer_load_dword v220, v3, s[76:79], s41 offen offset:{o}')
            a(f'buffer_load_dword v220, v7, s[72:75], s43 offen offset:{o}')
        a(f's_add_u32 s41, s41, {512 * 4096}')
        for o in ([0, 64] if OPT.get('t64') else [0]):
            a(f'buffer_load_dword v220, v22, s[76:79], s41 offen offset:{o}')
    a('s_lshr_b32 s38, s35, 1')
    a('s_and_b32 s39, s35, 1')
    a('s_lshl_b32 s40, s3, 1')
    a('s_add_u32 s40, s40, s38')
    a('s_xor_b32 s41, s40, 1')
    w_addr_setup(a, WA, 2, 40, 4)
    a('v_lshlrev_b32 v7, 4, v1')
    a('s_lshl_b32 s42, s39, 12')
    a(f's_add_u32 s43, s42, {WTILE}')
    a(f'v_add_u32 v{AAR}, s43, v7')
    a('s_xor_b32 s43, s43, 4096')
    a(f'v_add_u32 v{AAR + 1}, s43, v7')
    a(f'v_add_u32 v{AAR + 2}, {WTILE + 8192}, v7')
    a('s_lshl_b32 s44, s36, 3')
    a('s_add_u32 s44, s44, s40')
    a('s_lshl_b32 s44, s44, 4')
    a('v_add_u32 v2, s44, v5')
    a(f'v_mov_b32 v{B2R}, 0')
    a('v_lshlrev_b32 v3, 1, v2')
    a(f'buffer_load_short_d16_hi v{B2R}, v3, s[8:11], 0 offen')
    a('v_mul_u32_u24 v2, 1152, v2')
    a('v_lshl_add_u32 v22, v6, 3, v2')
    a('s_mul_i32 s45, s37, 288')
    a('s_lshl_b32 s46, s39, 7')
    a('s_add_u32 s46, s46, s45')
    a('s_lshl_b32 s47, s39, 2')
    a('s_add_u32 s47, s47, s45')
    a('s_add_u32 s47, s47, 256')
    for t in range(4):
        a(f'buffer_load_dwordx2 v[{X1R + 2 * t}:{X1R + 2 * t + 1}], v22, s[56:59], s46 offen offset:{32 * t}')
    a(f'buffer_load_dword v{X1R + 8}, v22, s[56:59], s47 offen')
    a('v_lshlrev_b32 v3, 4, v6')
    a('s_lshl_b32 s48, s46, 1')
    a(f's_add_u32 s48, s48, {5 * 2304}')
    a('s_lshl_b32 s49, s47, 1')
    a(f's_add_u32 s49, s49, {5 * 2304}')
    for t in range(4):
        a(f'buffer_load_dwordx4 v[{GBR + 4 * t}:{GBR + 4 * t + 3}], v3, s[12:15], s48 offen offset:{64 * t}')
    a(f'buffer_load_dwordx2 v[{GBR + 16}:{GBR + 17}], v3, s[12:15], s49 offen')

    def act_off(ks, t):
        if t < 4:
            return 0, ks * 9216 + t * 1024
        if t < 8:
            return 1, ks * 9216 + (t - 4) * 1024
        return 2, ks * 9216

    consumer_loop(k, a, 'g2', G2_NST, G2_STAGES, G2_SLOT, 2, 9, WA, [AAR, AAR + 1, AAR + 2], FA, FB, ACC, 4096,
                  act_off, True)
    acc = lambda m, t: ACC + 4 * (m * 9 + t)
    a('s_cmp_eq_u32 s39, 1')
    a('s_cbranch_scc0 g2_noswap')
    for m in range(2):
        for i in range(2):
            a(f'v_swap_b32 v{acc(m, 8) + i}, v{acc(m, 8) + 2 + i}')
    a.label('g2_noswap')
    a('s_lshl_b32 s50, s37, 4')
    a('s_add_u32 s50, s50, s36')
    a('s_lshl_b32 s50, s50, 2')
    a('s_add_u32 s50, s50, s3')
    a('s_lshl_b32 s50, s50, 2')
    a('v_lshlrev_b32 v23, 2, v1')
    for x, (m, t0, zo) in ((1, (0, 4, 2)), (2, (1, 0, 0)), (3, (1, 4, 2))):
        a(f's_xor_b32 s51, s35, {x}')
        a('s_add_u32 s51, s51, s50')
        a('s_lshl_b32 s51, s51, 2')
        a('s_add_u32 s51, s51, s35')
        a(f's_mul_i32 s51, s51, {PART_MSG}')
        o = FA + 12 * (x - 1)
        for t in range(4):
            r = acc(m, t0 + t)
            a(f'v_cvt_pk_bf16_f32 v{o + 2 * t}, v{r}, v{r + 1}')
            a(f'v_cvt_pk_bf16_f32 v{o + 2 * t + 1}, v{r + 2}, v{r + 3}')
        r = acc(m, 8) + zo
        a(f'v_cvt_pk_bf16_f32 v{o + 8}, v{r}, v{r + 1}')
        a(f'buffer_store_dwordx4 v[{o}:{o + 3}], v7, s[64:67], s51 offen sc0 sc1')
        a(f'buffer_store_dwordx4 v[{o + 4}:{o + 7}], v7, s[64:67], s51 offen offset:1024 sc0 sc1')
        a(f'buffer_store_dword v{o + 8}, v23, s[64:67], s51 offen offset:2048 sc0 sc1')
    a('s_lshl_b32 s52, s50, 6')
    a('s_lshl_b32 s53, s35, 2')
    a('s_add_u32 s53, s53, s52')
    a('v_lshlrev_b32 v2, 6, v1')
    a('v_mov_b32 v3, 1')
    a('s_waitcnt vmcnt(0)')
    a('s_mov_b64 exec, 15')
    a('buffer_store_dword v3, v2, s[68:71], s53 offen sc0 sc1')
    a('s_mov_b64 exec, -1')
    a('s_lshl_b32 s53, s35, 6')
    a('s_add_u32 s53, s53, s52')
    a('s_mov_b32 s54, 0')
    a.label('g2_poll')
    a(f'buffer_load_dwordx4 v[{FB}:{FB + 3}], off, s[68:71], s53 sc0 sc1')
    a('s_add_u32 s54, s54, 1')
    a('s_waitcnt vmcnt(0)')
    a(f'v_and_b32 v{FB}, v{FB}, v{FB + 1}')
    a(f'v_and_b32 v{FB + 2}, v{FB + 2}, v{FB + 3}')
    a(f'v_and_b32 v{FB}, v{FB}, v{FB + 2}')
    a(f'v_readfirstlane_b32 s55, v{FB}')
    a('s_cmp_eq_u32 s55, 1')
    a('s_cbranch_scc1 g2_ready')
    a('s_cmp_lt_u32 s54, 0x40000')
    a('s_cbranch_scc1 g2_poll')
    a.label('g2_ready')
    k.stamp_mid(2)
    a('s_add_u32 s50, s50, s35')
    a('s_lshl_b32 s50, s50, 2')
    for x in (1, 2, 3):
        a(f's_xor_b32 s51, s35, {x}')
        a('s_add_u32 s51, s51, s50')
        a(f's_mul_i32 s51, s51, {PART_MSG}')
        o = FB + 12 * (x - 1)
        a(f'buffer_load_dwordx4 v[{o}:{o + 3}], v7, s[64:67], s51 offen sc0 sc1')
        a(f'buffer_load_dwordx4 v[{o + 4}:{o + 7}], v7, s[64:67], s51 offen offset:1024 sc0 sc1')
        a(f'buffer_load_dword v{o + 8}, v23, s[64:67], s51 offen offset:2048 sc0 sc1')
    a('s_mov_b32 s32, 0xffff0000')
    own = [acc(0, t) + i for t in range(4) for i in range(4)] + [acc(0, 8), acc(0, 8) + 1]
    T = FA
    for x in (1, 2, 3):
        a(f's_waitcnt vmcnt({3 * (3 - x)})')
        o = FB + 12 * (x - 1)
        for d in range(9):
            a(f'v_lshlrev_b32 v{T}, 16, v{o + d}')
            a(f'v_and_b32 v{T + 1}, s32, v{o + d}')
            a(f'v_add_f32 v{own[2 * d]}, v{own[2 * d]}, v{T}')
            a(f'v_add_f32 v{own[2 * d + 1]}, v{own[2 * d + 1]}, v{T + 1}')
    round_list(a, own, T, 32)
    for r in own:
        a(f'v_add_f32 v{r}, v{r}, v{B2R}')
    round_list(a, own, T, 32)
    for i, r in enumerate(own):
        a(f'v_mul_f32 v{r}, v{r}, v{GBR + i}')
    round_list(a, own, T, 32)
    for d in range(9):
        a(f'v_lshlrev_b32 v{T}, 16, v{X1R + d}')
        a(f'v_and_b32 v{T + 1}, s32, v{X1R + d}')
        a(f'v_add_f32 v{own[2 * d]}, v{own[2 * d]}, v{T}')
        a(f'v_add_f32 v{own[2 * d + 1]}, v{own[2 * d + 1]}, v{T + 1}')
        a(f'v_cvt_pk_bf16_f32 v{FB + d}, v{own[2 * d]}, v{own[2 * d + 1]}')
    for t in range(4):
        a(f'buffer_store_dwordx2 v[{FB + 2 * t}:{FB + 2 * t + 1}], v22, s[60:63], s46 offen offset:{32 * t}')
    a(f'buffer_store_dword v{FB + 8}, v22, s[60:63], s47 offen')
    k.stamp_end(5)
    a.label('g2_done')
    a('s_endpgm')
    return k
```

```python
from common import *

N_GEMV = 108
N_WT = 64


def build_p0(stamp=None):
    npf = 80 if OPT.get('pf0') else 0
    k = Kernel('p0_kernel', 256 if npf else N_GEMV + N_WT, 256, 37376, 80, stamp_id=stamp)
    a = k.a
    k.stamp_begin()
    a(f's_cmp_ge_u32 s2, {N_GEMV + N_WT}')
    a('s_cbranch_scc1 p0_pf')
    a(f's_load_dwordx2 s[4:5], s[0:1], {K_WS}')
    a(f's_cmp_ge_u32 s2, {N_GEMV}')
    a('s_cbranch_scc1 p0_wt')
    a(f's_load_dwordx4 s[8:11], s[0:1], {K_C}')
    a('v_and_b32 v1, 3, v0')
    a('v_lshrrev_b32 v2, 2, v0')
    a('s_movk_i32 s3, 6912')
    a('v_mul_lo_u32 v3, v2, s3')
    a('v_lshl_add_u32 v3, v1, 4, v3')
    a('v_lshlrev_b32 v4, 1, v2')
    a('s_lshl_b32 s24, s2, 6')
    for i in range(9):
        a(f'v_mov_b32 v{8 + i}, 0')
    a('s_waitcnt lgkmcnt(0)')
    srd(a, 12, 8, 0, D * 2)
    srd(a, 16, 10, 0, D * 3456 * 2)
    srd(a, 20, 4, WS_MOD, SZ_MOD)
    for i in range(9):
        a(f'buffer_load_short_d16_hi v{8 + i}, v4, s[12:15], 0 offen offset:{128 * i}')
    for i in range(9):
        a(f'buffer_load_dwordx4 v[{20 + 4 * i}:{23 + 4 * i}], v3, s[16:19], s24 offen' + pol('p_in'))
        if i < 8:
            a(f's_add_u32 s24, s24, {64 * 6912}')
    a('s_mov_b32 s25, 0xffff0000')
    for j in range(8):
        a(f'v_mov_b32 v{60 + j}, 0')
    a('s_waitcnt vmcnt(9)')
    for i in range(9):
        a(f'v_mul_f32 v{70 + i % 2}, {f32(-LOG2E)}, v{8 + i}')
        a(f'v_exp_f32 v{70 + i % 2}, v{70 + i % 2}')
        a(f'v_add_f32 v{70 + i % 2}, 1.0, v{70 + i % 2}')
        a(f'v_rcp_f32 v{70 + i % 2}, v{70 + i % 2}')
        a(f'v_mul_f32 v{8 + i}, v{8 + i}, v{70 + i % 2}')
        round_bf16(a, 8 + i, 8 + i)
    for i in range(9):
        a(f's_waitcnt vmcnt({8 - i})')
        for d in range(4):
            w = 20 + 4 * i + d
            a(f'v_lshlrev_b32 v72, 16, v{w}')
            a(f'v_and_b32 v73, s25, v{w}')
            a(f'v_fmac_f32 v{60 + 2 * d}, v{8 + i}, v72')
            a(f'v_fmac_f32 v{61 + 2 * d}, v{8 + i}, v73')
    for pat in ('row_ror:4', 'row_ror:8'):
        for j in range(8):
            a(f'v_add_f32_dpp v{60 + j}, v{60 + j}, v{60 + j} {pat} {DPPM}')
    a('v_lshrrev_b32 v5, 4, v0')
    a('v_lshlrev_b32 v5, 7, v5')
    a('v_lshl_add_u32 v5, v1, 5, v5')
    a('v_and_b32 v6, 15, v0')
    a('v_cmp_gt_u32 vcc, 4, v6')
    a('s_and_saveexec_b64 s[26:27], vcc')
    a('ds_write_b128 v5, v[60:63]')
    a('ds_write_b128 v5, v[64:67] offset:16')
    a('s_mov_b64 exec, s[26:27]')
    a('s_waitcnt lgkmcnt(0)')
    a('s_barrier')
    a('v_cmp_gt_u32 vcc, 32, v0')
    a('s_and_saveexec_b64 s[26:27], vcc')
    a('s_cbranch_execz p0_end')
    a('v_lshlrev_b32 v5, 2, v0')
    for p in range(16):
        a(f'ds_read_b32 v{20 + p}, v5 offset:{128 * p}')
    a('s_waitcnt lgkmcnt(0)')
    for st in (1, 2, 4, 8):
        for p in range(0, 16, 2 * st):
            a(f'v_add_f32 v{20 + p}, v{20 + p}, v{20 + p + st}')
    round_bf16(a, 20, 20)
    a('v_add_f32 v21, 1.0, v20')
    round_bf16(a, 21, 21)
    a('s_sub_u32 s28, s2, 18')
    a('s_cmp_lt_u32 s28, 18')
    a('s_cselect_b32 s29, 1, 0')
    a('s_sub_u32 s28, s2, 72')
    a('s_cmp_lt_u32 s28, 18')
    a('s_cselect_b32 s29, 1, s29')
    a('s_cmp_eq_u32 s29, 1')
    a('s_cbranch_scc0 p0_nop1')
    a('v_mov_b32 v20, v21')
    a.label('p0_nop1')
    a('s_lshl_b32 s24, s2, 7')
    a('buffer_store_dword v20, v5, s[20:23], s24 offen')
    a('s_branch p0_end')
    a.label('p0_wt')
    a(f's_load_dwordx4 s[8:11], s[0:1], {K_WR}')
    a(f's_sub_u32 s3, s2, {N_GEMV}')
    a('s_and_b32 s24, s3, 7')
    a('s_lshr_b32 s25, s3, 3')
    a('s_lshl_b32 s26, s24, 3')
    a('s_lshl_b32 s27, s25, 8')
    a('s_add_u32 s26, s26, s27')
    a('s_mul_i32 s26, s26, 578')
    a('v_lshlrev_b32 v1, 4, v0')
    a('s_waitcnt lgkmcnt(0)')
    srd(a, 12, 8, 0, S * NCOL * 2)
    srd(a, 16, 10, 0, S * NCOL * 2)
    srd(a, 20, 4, WS_WT, SZ_COL)
    srd(a, 36, 4, WS_FLAGS, 65536)
    a('v_lshlrev_b32 v2, 2, v0')
    a('v_mov_b32 v3, 0')
    a('s_lshl_b32 s40, s3, 10')
    a('buffer_store_dword v3, v2, s[36:39], s40 offen')
    for i in range(4):
        a(f's_add_u32 s{28 + i}, s26, {i * 64 * 578}')
    for arr in range(2):
        for i in range(4):
            b = 8 + 4 * (arr * 4 + i)
            a(f'buffer_load_dwordx4 v[{b}:{b + 3}], v1, s[{12 + 4 * arr}:{15 + 4 * arr}], s{28 + i} offen' + pol('p_in'))
    a('v_cmp_gt_u32 vcc, 33, v0')
    a('s_and_saveexec_b64 s[32:33], vcc')
    a('s_cbranch_execz p0_wt_notail')
    a('v_add_u32 v2, 4096, v1')
    for arr in range(2):
        for i in range(4):
            b = 40 + 4 * (arr * 4 + i)
            a(f'buffer_load_dwordx4 v[{b}:{b + 3}], v2, s[{12 + 4 * arr}:{15 + 4 * arr}], s{28 + i} offen' + pol('p_in'))
    a('s_waitcnt vmcnt(0)')
    for blk in range(8):
        b = 40 + 4 * blk
        a(f'ds_write_b128 v2, v[{b}:{b + 3}] offset:{blk * 4624}')
    a.label('p0_wt_notail')
    a('s_mov_b64 exec, s[32:33]')
    a('s_waitcnt vmcnt(0)')
    for blk in range(8):
        b = 8 + 4 * blk
        a(f'ds_write_b128 v1, v[{b}:{b + 3}] offset:{blk * 4624}')
    a('v_and_b32 v3, 7, v0')
    a('v_lshrrev_b32 v4, 3, v0')
    a('s_movk_i32 s34, 578')
    a('v_mul_lo_u32 v5, v3, s34')
    a('v_lshl_add_u32 v5, v4, 1, v5')
    a('v_lshlrev_b32 v6, 13, v4')
    a('v_lshl_add_u32 v6, v3, 4, v6')
    a('s_lshr_b32 s34, s24, 1')
    a('s_lshl_b32 s34, s34, 1')
    a('s_lshr_b32 s35, s25, 2')
    a('s_add_u32 s34, s34, s35')
    a('s_lshl_b32 s34, s34, 6')
    a('s_and_b32 s35, s25, 3')
    a('s_lshl_b32 s35, s35, 4')
    a('s_add_u32 s34, s34, s35')
    a('s_and_b32 s35, s24, 1')
    a('s_lshl_b32 s35, s35, 3')
    a('s_add_u32 s34, s34, s35')
    a('s_lshl_b32 s34, s34, 4')
    a('s_waitcnt lgkmcnt(0)')
    a('s_barrier')
    for r in range(10):
        bank = 8 + 16 * (r % 4)
        for i in range(4):
            a(f'ds_read_u16 v{bank + i}, v5 offset:{i * 4624 + r * 64}')
            a(f'ds_read_u16 v{bank + 4 + i}, v5 offset:{(4 + i) * 4624 + r * 64}')
        if r >= 1:
            pb = 8 + 16 * ((r - 1) % 4)
            a('s_waitcnt lgkmcnt(8)')
            for i in range(4):
                a(f'v_lshl_or_b32 v{pb + 8 + i}, v{pb + 4 + i}, 16, v{pb + i}')
            a(f'buffer_store_dwordx4 v[{pb + 8}:{pb + 11}], v6, s[20:23], s34 offen' + pol('p_st'))
            a(f's_add_u32 s34, s34, {32 * 8192}')
    pb = 8 + 16 * (9 % 4)
    a('s_waitcnt lgkmcnt(0)')
    for i in range(4):
        a(f'v_lshl_or_b32 v{pb + 8 + i}, v{pb + 4 + i}, 16, v{pb + i}')
    a(f'buffer_store_dwordx4 v[{pb + 8}:{pb + 11}], v6, s[20:23], s34 offen' + pol('p_st'))
    a('s_branch p0_end')
    a.label('p0_pf')
    if npf:
        a('s_sub_u32 s3, s2, 176')
        a('s_cmp_ge_u32 s3, 80')
        a('s_cbranch_scc1 p0_done')
        a('v_and_b32 v1, 63, v0')
        a('v_lshrrev_b32 v2, 6, v0')
        a('v_readfirstlane_b32 s4, v2')
        a('s_lshr_b32 s5, s3, 3')
        a('s_lshl_b32 s5, s5, 2')
        a('s_add_u32 s5, s5, s4')
        a('s_and_b32 s3, s2, 7')
        pf_w1_body(a, 3, 5, 40, 8, 2, 4, rev=False, depth=OPT.get('pf0depth'), last=OPT.get('pf0last', 342))
    else:
        a('s_branch p0_done')
    a.label('p0_end')
    a('s_mov_b64 exec, -1')
    k.stamp_end()
    a.label('p0_done')
    a('s_endpgm')
    return k
```

```python
from common import *
from k_gemm import interleave, w_addr_setup, PART_MSG

WTILE = 16384
SWS, SW1, SW2, SB2, SOUT, SB1 = 28, 32, 8, 12, 16, 20
sq = lambda b: f's[{b}:{b + 3}]'
A_L4, A_L16 = 15, 14
VLO, VHI = 9, 10
POLL_MAX = 30000
FL_H2, FL_U = OPT.get('flh', 256), OPT.get('flu', 384)
NW1 = OPT.get('nw1', 5)
G1_W0, G1_WEND, G1_ACT = 163840 - NW1 * WTILE, 163840, 12288
NPRE = OPT.get('npre', 4 if NW1 == 5 else 6)
WS0 = 1 if NW1 == 5 else 0
NW2 = OPT.get('nw2', 4)
assert NW1 - 1 <= NPRE + WS0 <= NW1
G2_ACT = 18432
G2_WST, G2_A0, G2_AST = (WTILE + G2_ACT, WTILE, WTILE + G2_ACT) if NW2 == 4 else (WTILE, NW2 * WTILE, G2_ACT)
NPRE2 = OPT.get('npre2', 3 if NW2 == 4 else NW2)
assert NW2 - 1 <= NPRE2 <= NW2
G1_STAGES = 32
H2S = OPT.get('h2s', 0)
H2_BLK = 2048 if H2S else 1536
G1_GACT = 8 * H2_BLK
VH2 = 20
VFR = 23


def h2_line(a, r, t, par):
    a(f'v_lshrrev_b32 v{t}, 3, v{r}')
    a(f'v_add_u32 v{t}, {par}, v{t}')
    a(f'v_and_b32 v{r}, 7, v{r}')
    a(f'v_lshlrev_b32 v{r}, 4, v{r}')
    a(f'v_lshl_add_u32 v{r}, v{t}, 7, v{r}')
    a(f'v_add_u32 v{t}, 4, v{t}')
    a(f'v_mul_u32_u24 v{t}, 37, v{t}')
    a(f'v_lshrrev_b32 v{t}, 8, v{t}')
    a(f'v_lshl_add_u32 v{r}, v{t}, 7, v{r}')


def h2_addr(a):
    a(f'v_mov_b32 v{VH2}, v1')
    h2_line(a, VH2, 2, 0)
    a(f'v_add_u32 v{VH2 + 2}, 32, v1')
    h2_line(a, VH2 + 2, 2, 2)
    a(f'v_and_b32 v{VH2 + 1}, 31, v1')
    a('v_cmp_gt_u32 vcc, 32, v1')
    a(f'v_add_u32 v3, 64, v{VH2 + 1}')
    a(f'v_cndmask_b32 v{VH2 + 1}, v{VH2 + 1}, v3, vcc')
    a('v_cndmask_b32 v3, 2, 0, vcc')
    h2_line(a, VH2 + 1, 2, 'v3')
    a(f'v_lshl_add_u32 v{VH2 + 1}, v3, 10, v{VH2 + 1}')
    a(f'v_subrev_u32 v{VH2 + 1}, 1024, v{VH2 + 1}')


def act_src(j):
    return VH2 + j if H2S else A_L16
G2_NST, G2_SLOT, G2_STAGES = 4, WTILE + 18432, 18


XR_RHO, XR_J, XR_W = {0: (1, 4, 16), 1: (16, 1, 4), 2: (4, 1, 16), 3: (2, 1, 16), 4: (8, 1, 16)}[OPT.get('xrow', 0)]


def code_touch(a, name, y0, wave, v, first='f_kernel'):
    a(f's_sub_u32 s50, s37, {y0}')
    a(f's_cbranch_scc1 {name}_no')
    a(f's_cmp_eq_u32 s3, {wave}')
    a(f's_cbranch_scc0 {name}_no')
    a('s_lshl_b32 s50, s50, 13')
    a(f's_add_u32 s50, s50, {first}-f_kernel')
    a(f'v_lshl_add_u32 v{v}, v1, 7, s50')
    a(f'v_min_u32 v{v}, f_end-f_kernel-4, v{v}')
    a('s_getpc_b64 s[50:51]')
    a.label(name + '_pc')
    a(f's_sub_u32 s50, s50, {name}_pc-f_kernel')
    a('s_subb_u32 s51, s51, 0')
    a(f'global_load_dword v{v + 1}, v{v}, s[50:51]')
    a.label(name + '_no')


def w_lane(a, pitch):
    a('v_lshrrev_b32 v2, 4, v1')
    a('v_and_b32 v3, 15, v1')
    a(f'v_lshlrev_b32 v{VLO}, 1, v2')
    a(f'v_xor_b32 v{VLO}, v{VLO}, v3')
    a(f'v_xor_b32 v{VHI}, 8, v{VLO}')
    a(f'v_mul_u32_u24 v2, {pitch}, v2')
    a(f'v_lshl_add_u32 v{VLO}, v{VLO}, 4, v2')
    a(f'v_lshl_add_u32 v{VHI}, v{VHI}, 4, v2')


def g1_ids(a):
    a('s_mul_i32 s63, s36, 27')
    a('s_add_u32 s63, s63, s37')
    a('s_mul_i32 s62, s63, 171')
    a('s_lshr_b32 s62, s62, 10')
    a('s_mul_i32 s60, s62, 6')
    a('s_sub_u32 s63, s63, s60')
    a('s_lshl_b32 s60, s62, 8')
    a(f's_mul_i32 s61, s39, {XR_W * F * 2}')
    a('s_add_u32 s60, s60, s61')
    a(f's_mul_i32 s61, s63, {256 * H2_BLK}')
    a(f's_mul_i32 s24, s39, {2 * H2_BLK}')
    a('s_add_u32 s61, s61, s24')
    a(f's_add_u32 s61, s61, {WS_H2}')
    if OPT.get('rot1', 1):
        a('s_lshl_b32 s24, s63, 4')
        a('s_add_u32 s24, s24, 1')
        a('s_mul_i32 s24, s24, 171')
        a('s_lshr_b32 s24, s24, 9')
        a(f's_mul_i32 s25, s24, {64 * F * 2}')
        a('s_add_u32 s60, s60, s25')
        a(f's_mul_i32 s25, s24, {G1_ACT}')
        a('s_add_u32 s61, s61, s25')
    a('s_lshl_b32 s24, s39, 12')
    a(f's_add_u32 s24, s24, {G1_W0 + WS0 * WTILE}')
    w_lane(a, F * 2 * XR_RHO)
    a(f'v_lshlrev_b32 v{A_L16}, 4, v1')
    a(f'v_lshlrev_b32 v{A_L4}, 2, v1')


def w_issue(a, srd, sb, sm, pitch, gemm2, wrap=False, fill=None):
    a(f's_mov_b32 m0, s{sm}')
    for j in range(4):
        hi = (j & 1) if gemm2 else (j >> 1)
        so = f's{sb}' if j == 0 else f's{24 + j}'
        if j:
            a(f's_add_u32 s{24 + j}, s{sb}, {j * ((4 if gemm2 else XR_J) * pitch - 1024)}')
        a(f'buffer_load_dwordx4 v{(VLO, VHI)[hi]}, {sq(srd)}, {so} offen offset:{1024 * j}' + pol('p_w2' if gemm2 else 'p_w1') + ' lds')
        for t in (fill[j] if fill else []):
            a(t)
    if OPT.get('xv') != 1:
        a(f's_add_u32 s{sb}, s{sb}, {64 * pitch}')
    if OPT.get('xv', 0) > 1 and wrap:
        a('s_add_u32 s6, s6, 1')
        a(f's_cmp_eq_u32 s6, {OPT["xv"]}')
        a(f's_cselect_b32 s25, {OPT["xv"] * 64 * pitch}, 0')
        a('s_cselect_b32 s6, 0, s6')
        a(f's_sub_u32 s{sb}, s{sb}, s25')
    if not gemm2 and OPT.get('rot1', 1):
        a(f's_cmp_ge_u32 s{sb}, {SZ_W}')
        a(f's_cselect_b32 s25, {SZ_W}, 0')
        a(f's_sub_u32 s{sb}, s{sb}, s25')
    if gemm2 and OPT.get('rot2', 1):
        a(f's_cmp_ge_u32 s{sb}, s6')
        a(f's_cselect_b32 s25, {1152 * pitch}, 0')
        a(f's_sub_u32 s{sb}, s{sb}, s25')


def g1_preload(a, n, lab):
    if n <= 0:
        return
    a('s_cmp_lt_u32 s2, 216')
    a(f's_cbranch_scc0 {lab}')
    for _ in range(n):
        w_issue(a, SW1, 60, 24, F * 2, False)
        a(f's_add_u32 s24, s24, {WTILE}')
    a.label(lab)


def flag_poll(a, name, va, soff, scnt, sleep, off=0):
    a(f's_mov_b32 s{scnt}, 0')
    a.label(name)
    a(f'buffer_load_dword v3, v{va}, {sq(SWS)}, {soff} offen offset:{off} sc1')
    a(f's_add_u32 s{scnt}, s{scnt}, 1')
    a('s_waitcnt vmcnt(0)')
    a('v_cmp_eq_u32 vcc, 0, v3')
    a('s_and_b64 exec, vcc, vcc')
    a(f's_cbranch_scc0 {name}_ok')
    if sleep:
        a(f's_sleep {sleep}')
    a(f's_cmp_lt_u32 s{scnt}, {POLL_MAX}')
    a(f's_cbranch_scc1 {name}')
    a.label(name + '_ok')
    a('s_mov_b64 exec, -1')


def stage_check(a, sleep):
    name = a.newlabel('chk')
    a('s_and_b32 s25, s54, 3')
    a('s_cmp_eq_u32 s25, 3')
    a(f's_cbranch_scc1 {name}_ok')
    a('s_mov_b32 s51, 0')
    a.label(name)
    a(f'buffer_load_dword v3, v2, {sq(SWS)}, s50 offen sc1')
    a('s_add_u32 s51, s51, 1')
    a('s_mov_b64 exec, -1')
    a('s_waitcnt vmcnt(0)')
    a('v_cmp_ne_u32 vcc, 0, v3')
    a('s_lshr_b64 s[54:55], vcc, s56')
    a('s_and_b32 s25, s54, 3')
    a('s_cmp_eq_u32 s25, 3')
    a(f's_cbranch_scc1 {name}_ok')
    if sleep:
        a(f's_sleep {sleep}')
    a('s_lshl_b64 exec, 0xff, s56')
    a(f's_cmp_lt_u32 s51, {POLL_MAX}')
    a(f's_cbranch_scc1 {name}')
    a('s_mov_b64 exec, -1')
    a.label(name + '_ok')
    a('s_lshr_b64 s[54:55], s[54:55], 2')
    a('s_add_u32 s56, s56, 2')


def refresh_issue(a):
    a(f'buffer_load_dword v{VFR}, v2, {sq(SWS)}, s50 offen sc1')


def refresh_merge(a):
    a(f'v_or_b32 v3, v3, v{VFR}')
    a('v_cmp_ne_u32 vcc, 0, v3')
    a('s_lshr_b64 s[54:55], vcc, s56')


def ring_loop(a, name, nst, nstages, nw_, na_, issue, k=None, extra=0):
    nld = nw_ + na_
    for t in range(nst - 2):
        a(f's_waitcnt vmcnt({(nst - 2 - t) * na_ + t * nld + extra})')
        a('s_barrier')
        issue()
    a(f's_movk_i32 s59, {nstages - (nst - 1) - (nst - 2)}')
    a.label(name + '_ld_loop')
    a(f's_waitcnt vmcnt({(nst - 2) * nld})')
    a('s_barrier')
    if k is not None and k.stamp_id is not None and 'q1' in k.sel:
        for i, v in enumerate((24, 20, 16, 12, 8, 4)):
            lab = a.newlabel('q')
            a(f's_cmp_eq_u32 s59, {v}')
            a(f's_cbranch_scc0 {lab}')
            k.mark(f'q{i + 1}')
            if i in (2, 3):
                k.mark(f'c{i - 2}', True)
            a.label(lab)
    issue()
    a('s_sub_u32 s59, s59, 1')
    a('s_cmp_lg_u32 s59, 0')
    a(f's_cbranch_scc1 {name}_ld_loop')
    for t in range(nst - 1):
        a(f's_waitcnt vmcnt({(nst - 2 - t) * nld})')
        a('s_barrier')


def consumer_loop(k, a, name, nstages, init, adv, nw, nact, WA, AA, FA, FB, ACC, w_h_off, act_off, gemm2, sw, sa, hook=None, loop_hook=None):
    CW = WA + 8
    CA = WA + 8 + nw

    def set_addr():
        return [f'v_add_u32 v{CW + m}, s{sw}, v{WA + m}' for m in range(nw)] + \
               [f'v_add_u32 v{CA + i}, s{sa}, v{r}' for i, r in enumerate(AA)]

    def reads(Fr, ks):
        wr, ar_ = [], []
        for m in range(nw):
            wr.append([f'ds_read_b64_tr_b16 v[{Fr + 4 * m + 2 * h}:{Fr + 4 * m + 2 * h + 1}], v{CW + m} '
                       f'offset:{ks * 8192 + h * w_h_off}' for h in range(2)])
        for t in range(nact):
            ai, off = act_off(ks, t)
            r = Fr + 4 * nw + 4 * t
            ar_.append(f'ds_read_b128 v[{r}:{r + 3}], v{CA + ai} offset:{off}')
        if OPT.get('xw') == 1 + gemm2:
            wr = []
        if OPT.get('xa') == 1 + gemm2:
            return [x for w in wr for x in w]
        return [ar_[0]] + [x for w in wr for x in w] + ar_[1:]

    def mfmas(Fr):
        out = []
        order = [(t, m) for t in range(nact) for m in range(nw)]
        mo = OPT.get('mord2' if gemm2 else 'mord1', 0)
        if mo == 1:
            order = [(t, m) for m in range(nw) for t in range(nact)]
        if mo == 2:
            order = [(t, m if t % 2 == 0 else nw - 1 - m) for t in range(nact) for m in range(nw)]
        if mo == 3:
            order = [(t if m % 2 == 0 else nact - 1 - t, m) for m in range(nw) for t in range(nact)]
        for t, m in order:
            if 1:
                acc = ACC + 4 * (m * nact + t)
                wf = f'v[{Fr + 4 * m}:{Fr + 4 * m + 3}]'
                af = f'v[{Fr + 4 * nw + 4 * t}:{Fr + 4 * nw + 4 * t + 3}]'
                s0, s1 = (af, wf) if gemm2 else (wf, af)
                out.append(f'v_mfma_f32_16x16x32_bf16 v[{acc}:{acc + 3}], {s0}, {s1}, v[{acc}:{acc + 3}]')
        if OPT.get('x32') == 1 + gemm2:
            out = []
            for j in range(nw * nact // 2):
                acc = ACC + 16 * (j % (nw * nact // 4))
                wf = Fr + 4 * (j % nw)
                af = Fr + 4 * nw + 4 * (j % nact)
                out.append(f'v_mfma_f32_32x32x16_bf16 v[{acc}:{acc + 15}], v[{wf}:{wf + 3}], v[{af}:{af + 3}], v[{acc}:{acc + 15}]')
            return out
        if OPT.get('xm') == 1 + gemm2:
            out = [f'v_mov_b32 v{ACC}, v{ACC}' for _ in out]
        return out

    nm = nw * nact
    bar_gap = OPT.get('bargap', nm - 3)
    if OPT.get('x32') == 1 + gemm2:
        bar_gap = nm // 2 - 2
    for r in range(4 * nw * nact):
        a(f'v_mov_b32 v{ACC + r}, 0')
    for t in init + set_addr():
        a(t)
    a(f's_movk_i32 s59, {nstages - 1}')
    a('s_barrier')
    k.mark(name + 'go')
    if name == ('g2' if OPT.get('cg2') else 'g1'):
        k.mark('c0', True)
    for t in reads(FA, 0):
        a(t)
    if hook:
        hook()
    if OPT.get('advb', 0):
        for t in adv:
            a(t)
    a.label(name + '_mm_loop')
    if loop_hook:
        loop_hook()
    a('s_waitcnt lgkmcnt(0)')
    advb = OPT.get('advb', 0)
    fl = [(0, t) for t in reads(FB, 1)] + [(0, t) for t in ([] if advb else adv) + set_addr()]
    fl += [(bar_gap, 's_waitcnt lgkmcnt(0)'), (bar_gap, 's_barrier')]
    interleave(a, mfmas(FA), fl)
    fl = [(0, t) for t in reads(FA, 0)] + [(0, t) for t in (adv if advb else [])] + [(0, 's_sub_u32 s59, s59, 1'), (0, 's_cmp_lg_u32 s59, 0')]
    interleave(a, mfmas(FB), fl)
    a(f's_cbranch_scc1 {name}_mm_loop')
    a('s_waitcnt lgkmcnt(0)')
    interleave(a, mfmas(FA), [(0, t) for t in reads(FB, 1)])
    a('s_waitcnt lgkmcnt(0)')
    if not gemm2:
        a('s_barrier')
    interleave(a, mfmas(FB), [])
    k.mark(name + 'end')
    if name == ('g2' if OPT.get('cg2') else 'g1'):
        k.mark('c1', True)


def g2_ids(a):
    a('s_lshr_b32 s44, s36, 1')
    a('s_and_b32 s45, s36, 1')
    a('s_lshl_b32 s45, s45, 3')
    a('s_lshr_b32 s46, s37, 2')
    a('s_add_u32 s45, s45, s46')
    a('s_and_b32 s46, s37, 3')


RHB = 20
LW0, LW1 = 18, 19


def g1_held():
    rm = OPT.get('rm', 0)
    return [u for u in range(4, G1_STAGES) if rm >> u & 1]


def g1_batch(a, first=0, last=99):
    pitch = F * 2
    n = 0
    for i, u in enumerate(g1_held()):
        if not first <= i < last:
            continue
        for j in range(4):
            off = (u - 4) * 64 * pitch + j * 4 * pitch
            so = 's60'
            if off:
                so = f's{44 + n % 3}'
                a(f's_add_u32 {so}, s60, {off}')
            r = RHB + 16 * i + 4 * j
            a(f'buffer_load_dwordx4 v[{r}:{r + 3}], v{(VLO, VHI)[j >> 1]}, {sq(SW1)}, {so} offen' + pol('p_w1'))
            n += 1


def g1_first(a):
    a('s_mul_i32 s4, s39, 3072')
    for u in range(4):
        a(f's_add_u32 m0, s4, {(u + 1) * G1_ACT}')
        so = 's61'
        if u:
            so = 's25'
            a(f's_add_u32 s25, s61, {u * G1_GACT}')
        for j in range(3):
            a(f'buffer_load_dwordx4 v{act_src(j)}, {sq(SWS)}, {so} offen offset:{1024 * j}' + pol('p_sp1') + ' lds')


def g1_flag_addr(a):
    a('v_lshrrev_b32 v2, 1, v1')
    a('v_lshlrev_b32 v2, 13, v2')
    a('v_and_b32 v3, 1, v1')
    a('v_lshl_add_u32 v2, v3, 10, v2')
    a('s_lshl_b32 s46, s39, 11')
    a(f's_add_u32 s46, s46, {WS_FLG + FL_H2}')


def g1_gate(a):
    g1_flag_addr(a)
    m = (1 << 2 * OPT['hint1']) - 1
    a(f's_mov_b64 exec, {m:#x}')
    a(f'buffer_load_dword v3, v2, {sq(SWS)}, s46 offen offset:4 sc1')
    a('s_waitcnt vmcnt(0)')
    a('v_cmp_eq_u32 vcc, 0, v3')
    a('s_mov_b64 exec, -1')
    a('s_mov_b32 s47, vcc_lo')
    a('s_cbranch_vccnz f_h2done')
    g1_first(a)


def validate(a, va, offs, reload, scnt, sleep, vt=24):
    name = a.newlabel('val')
    a(f's_mov_b32 s{scnt}, 0')
    a.label(name)
    for i, (ad, off) in enumerate(zip(va, offs)):
        a(f'ds_read_b128 v[{vt + 4 * i}:{vt + 4 * i + 3}], v{ad} offset:{off}')
    rs = list(range(vt, vt + 4 * len(offs)))
    n = len(offs)
    cur = None
    for i in range(n):
        a(f's_waitcnt lgkmcnt({n - 1 - i})')
        r = vt + 4 * i
        if cur is None:
            a(f'v_max3_u32 v{r}, v{r}, v{r + 1}, v{r + 2}')
            a(f'v_max_u32 v{r}, v{r}, v{r + 3}')
        else:
            a(f'v_max3_u32 v{r}, v{r}, v{r + 1}, v{r + 2}')
            a(f'v_max3_u32 v{r}, v{r}, v{r + 3}, v{cur}')
        cur = r
    a(f'v_cmp_eq_u32 vcc, -1, v{cur}')
    a('s_and_b64 exec, vcc, vcc')
    a(f's_cbranch_scc0 {name}_ok')
    a(f's_cmp_lt_u32 s{scnt}, {POLL_MAX}')
    a(f's_cbranch_scc0 {name}_ok')
    if sleep:
        a(f's_cmp_eq_u32 s{scnt}, 0')
        a(f's_cbranch_scc1 {name}_ns')
        a(f's_sleep {sleep}')
        a.label(name + '_ns')
    a(f's_add_u32 s{scnt}, s{scnt}, 1')
    reload()
    a('s_mov_b64 exec, -1')
    a('s_waitcnt vmcnt(0)')
    a(f's_branch {name}')
    a.label(name + '_ok')
    a('s_mov_b64 exec, -1')


def g1_loader_r(k):
    a = k.a
    pitch = F * 2
    NS = OPT.get('sp1', 0)
    if OPT.get('hint1'):
        a('s_cmp_eq_u32 s47, 0')
        a('s_cbranch_scc1 g1_first_done')
        a('s_mov_b32 exec_lo, s47')
        a('s_mov_b32 exec_hi, 0')
        flag_poll(a, 'g1_hint', 2, 's46', 51, OPT.get('hsl3', 1), 4)
        g1_first(a)
        a.label('g1_first_done')
    elif NS and not OPT.get('spsite'):
        g1_first(a)
    held = g1_held()
    assert RHB + 16 * len(held) <= 256
    if OPT.get('rsite', 0) == 0:
        g1_batch(a)
    elif OPT.get('rsite', 0) == 2:
        g1_batch(a, OPT.get('rsp', 4))
    a('v_lshrrev_b32 v2, 1, v1')
    a('v_lshlrev_b32 v2, 13, v2')
    a('v_and_b32 v3, 1, v1')
    a('v_lshl_add_u32 v2, v3, 10, v2')
    a('s_lshl_b32 s50, s39, 11')
    a(f's_add_u32 s50, s50, {WS_FLG + FL_H2}')
    a('s_mul_i32 s4, s39, 3072')
    a(f's_sub_u32 s24, s24, {(NPRE + WS0) * WTILE}')
    a(f'v_add_u32 v{LW0}, s24, v{A_L16}')
    a(f'v_add_u32 v{LW1}, {4 * WTILE}, v{LW0}')
    if OPT.get('hsl'):
        a(f's_sleep {OPT["hsl"]}')
    a('s_mov_b64 s[54:55], 0')
    a(f's_mov_b32 s56, {2 * NS}')
    q = []
    slot = lambda u: (u + 1) % 5
    VAL = 16
    if NS:
        a(f'v_add_u32 v{VAL}, s4, v{A_L16}')
        q = [u for u in range(4) for j in range(3)]

    def act(u, sfx=None):
        if u == NS and NS:
            i = q.index('fl')
            a(f's_waitcnt vmcnt({len(q) - 1 - i})')
            a('v_cmp_ne_u32 vcc, 0, v3')
            a('s_lshr_b64 s[54:55], vcc, s56')
            a(f's_andn2_b64 exec, {(1 << 2 * NS) - 1:#x}, vcc')
            a('s_cbranch_scc0 g1_skipped_ok')
            flag_poll(a, 'g1_skipped', 2, 's50', 51, 2)
        if u >= NS and sfx is None:
            stage_check(a, OPT.get('hsl2', 1))
        a(f's_add_u32 m0, s4, {slot(u) * G1_ACT}')
        so = 's61'
        if u and OPT.get('xh') != 1:
            so = 's25'
            a(f's_add_u32 s25, s61, {u * G1_GACT}')
        for j in range(3):
            a(f'buffer_load_dwordx4 v{act_src(j)}, {sq(SWS)}, {so} offen offset:{1024 * j}' + (sfx or pol('p_h2' if u >= NS else 'p_sp1')) + ' lds')
            if sfx is None:
                q.append(u)

    def first_poll():
        a(f'buffer_load_dword v3, v2, {sq(SWS)}, s50 offen sc1')
        q.append('fl')

    def w(u):
        if u in held:
            if OPT.get('xd') == 3:
                return
            r = RHB + 16 * held.index(u)
            for j in range(4):
                ad, off = (LW1, 0) if slot(u) == 4 else (LW0, slot(u) * WTILE)
                a(f'ds_write_b128 v{ad}, v[{r + 4 * j}:{r + 4 * j + 3}] offset:{off + 1024 * j}')
            return
        a(f's_add_u32 m0, s24, {(u + WS0) % NW1 * WTILE}')
        for j in range(4):
            off = (u - NPRE) * 64 * pitch * (OPT.get('xv') != 1) + j * (XR_J * pitch - 1024)
            so = 's60'
            if off:
                so = f's{44 + j % 3}'
                a(f's_add_u32 {so}, s60, {off}')
            a(f'buffer_load_dwordx4 v{(VLO, VHI)[j >> 1]}, {sq(SW1)}, {so} offen offset:{1024 * j}' + pol('p_w1') + ' lds')
            q.append(u)
    for u in range(4):
        if not NS:
            act(u)
        if u == 0:
            k.mark('g1go')
            k.markv('xdr', 51)
    fp = OPT.get('spfp', NS - 5)
    if NS and fp < 0:
        first_poll()
    pend = []
    for t in range(G1_STAGES):
        last = max(i for i, u in enumerate(q) if u not in ('fl', 'fr') and u <= t)
        a(f's_waitcnt vmcnt({len(q) - 1 - last}) lgkmcnt(0)')
        if t < NS:
            validate(a, [VAL] * 3, [slot(t) * G1_ACT + 1024 * j for j in range(3)], lambda: act(t, ' sc1'), 51, OPT.get('spsl', 2))
            if t == 0:
                k.markv('xn', 51)
        if pend and pend[0] < last:
            pend.pop(0)
            refresh_merge(a)
        a('s_barrier')
        if NS and t == fp:
            first_poll()
        if OPT.get('rf1', 0) >> t & 1:
            refresh_issue(a)
            q.append('fr')
            pend.append(len(q) - 1)
        if k.stamp_id is not None and 'q1' in k.sel and t % 4 == 0 and 4 <= t <= 24:
            k.mark(f'q{t // 4}')
            if t in (12, 16):
                k.mark(f'c{t // 4 - 3}', True)
        u = t + 4
        if OPT.get('xd') == 1 or (OPT.get('xd') == 2 and u < G1_STAGES):
            if OPT['xd'] == 2:
                act(u)
            continue
        uw = t + NW1 - 1
        dow = NPRE <= uw < G1_STAGES
        if u in held or OPT.get('actfirst'):
            if u < G1_STAGES:
                act(u)
            if dow:
                w(uw)
        else:
            if dow:
                w(uw)
            if u < G1_STAGES:
                act(u)
    k.mark('g1end')


def g1_loader(k):
    a = k.a
    if OPT.get('rm'):
        return g1_loader_r(k)
    a('v_lshrrev_b32 v2, 1, v1')
    a('v_lshlrev_b32 v2, 13, v2')
    a('v_and_b32 v3, 1, v1')
    a('v_lshl_add_u32 v2, v3, 10, v2')
    a('s_lshl_b32 s50, s39, 11')
    a(f's_add_u32 s50, s50, {WS_FLG + FL_H2}')
    a(f's_mul_i32 s5, s63, {32 * G1_ACT}')
    a(f's_add_u32 s5, s5, {WS_H2 + 32 * G1_ACT}')
    a('s_mul_i32 s4, s39, 3072')
    a(f's_add_u32 s4, s4, {G1_ACT}')
    if OPT.get('xh', 0) > 1:
        a('s_mov_b32 s5, 0')
    if OPT.get('xv', 0) > 1:
        a('s_mov_b32 s6, 0')
        a(f's_sub_u32 s60, s60, {4 * 64 * F * 2}')
    if OPT.get('hsl'):
        a(f's_sleep {OPT["hsl"]}')
    prog = OPT.get('prog1', 1)
    if prog:
        a('s_mov_b64 s[54:55], 0')
        a('s_mov_b32 s56, 0')
    else:
        flag_poll(a, 'g1_fp', 2, 's50', 51, OPT.get('hsl2', 1))
        k.mark('g1go')
        k.markv('xdr', 51)

    def act():
        if prog:
            stage_check(a, OPT.get('hsl2', 1))
        a('s_mov_b32 m0, s4')
        for j in range(3):
            a(f'buffer_load_dwordx4 v{A_L16}, {sq(SWS)}, s61 offen offset:{1024 * j}' + pol('p_h2') + ' lds')
        if OPT.get('xh') != 1:
            a(f's_add_u32 s61, s61, {G1_ACT}')
        if OPT.get('xh', 0) > 1:
            a('s_add_u32 s5, s5, 1')
            a(f's_cmp_eq_u32 s5, {OPT["xh"]}')
            a(f's_cselect_b32 s25, {OPT["xh"] * G1_ACT}, 0')
            a('s_cselect_b32 s5, 0, s5')
            a('s_sub_u32 s61, s61, s25')
        a(f's_add_u32 s4, s4, {G1_ACT}')
        if OPT.get('rot1', 1):
            a('s_cmp_ge_u32 s61, s5')
            a(f's_cselect_b32 s25, {32 * G1_ACT}, 0')
            a('s_sub_u32 s61, s61, s25')
    for st in range(4):
        act()
        if prog and st == 0:
            k.mark('g1go')
            k.markv('xdr', 51)
    nt5 = OPT.get('t5n', 1) if OPT.get('t5f') else 0
    if nt5:
        a('s_lshl_b32 s58, s37, 2')
        a('s_add_u32 s58, s58, s39')
        a(f's_add_u32 s58, s58, {OPT["t5f"]}')
        a(f's_mul_i32 s58, s58, {6 * F * 2}')
        a('s_add_u32 s58, s58, s57')
        for r in range(nt5):
            a(f'buffer_load_dword v8, v17, {sq(SW1)}, s58 offen')
            a(f's_add_u32 s58, s58, {108 * 6 * F * 2}')
    a(f's_sub_u32 s24, s24, {5 * WTILE}')
    a(f's_sub_u32 s4, s4, {5 * G1_ACT}')

    sw2 = OPT.get('sw2', 0)
    fill = None
    if sw2:
        a('s_lshr_b32 s44, s36, 1')
        a('s_and_b32 s45, s36, 1')
        a('s_lshl_b32 s45, s45, 11')
        a(f's_mul_i32 s46, s44, {1152 * 4096}')
        a('s_add_u32 s45, s45, s46')
        a('s_lshl_b32 s46, s37, 2')
        a('s_add_u32 s46, s46, s39')
        a(f's_add_u32 s46, s46, {1152 - 108}')
        a('s_lshl_b32 s46, s46, 12')
        a('s_add_u32 s46, s46, s45')
        ld = [f's_buffer_load_dwordx2 s[100:101], {sq(SW2)}, s46 offset:{128 * i + 60}' for i in range(sw2)]
        adv = [[f's_add_u32 s46, s46, {128 * sw2}'],
               [f's_and_b32 s48, s46, {2048 - 128 * sw2}', f's_cselect_b32 s48, 0, {108 * 4096 + 2048}', 's_sub_u32 s46, s46, s48']]
        h = (sw2 + 1) // 2
        fill = [ld[:h], ld[h:] + adv[0], adv[1], []]

    def issue():
        w_issue(a, SW1, 60, 24, F * 2, False, True, fill)
        act()
        for _ in range(OPT.get('lgap', 0)):
            a('s_add_u32 s48, s48, 1')
        a(f's_add_u32 s24, s24, {WTILE}')
        a(f's_cmp_ge_u32 s24, {G1_WEND}')
        a(f's_cselect_b32 s25, {5 * WTILE}, 0')
        a(f's_cselect_b32 s26, {5 * G1_ACT}, 0')
        a('s_sub_u32 s24, s24, s25')
        a('s_sub_u32 s4, s4, s26')
    ring_loop(a, 'g1', 5, G1_STAGES, 4, 3, issue, k, nt5)
    k.mark('g1end')


def g1_consumer(k):
    a = k.a
    WA, AAR, BIAS, FA, FB, ACC = 8, 12, 24, 32, 60, 88
    a('s_and_b32 s46, s3, 1')
    a('s_lshr_b32 s47, s3, 1')
    a('s_lshl_b32 s48, s46, 7')
    a('s_lshl_b32 s49, s62, 8')
    a('s_add_u32 s48, s48, s49')
    a('v_lshlrev_b32 v7, 3, v6')
    for m in range(4):
        a(f'buffer_load_dwordx2 v[{BIAS + 2 * m}:{BIAS + 2 * m + 1}], v7, {sq(SB1)}, s48 offen offset:{32 * m}')
    for m in range(4):
        a(f's_lshl_b32 s{40 + m}, s46, 2')
        a(f's_add_u32 s{40 + m}, s{40 + m}, {m}')
    w_addr_setup(a, WA, 4, 40, 8)
    a('v_mul_u32_u24 v2, 1536, v6')
    a('v_lshl_add_u32 v2, v5, 4, v2')
    a('s_mul_i32 s48, s47, 768')
    a(f'v_add_u32 v{AAR}, s48, v2')
    a('s_mul_i32 s48, s63, 6')
    a('s_mul_i32 s49, s47, 3')
    a('s_add_u32 s48, s48, s49')
    a('s_lshl_b32 s49, s62, 2')
    a('s_lshl_b32 s50, s46, 1')
    a('s_add_u32 s49, s49, s50')
    a('s_mul_i32 s49, s49, 9')
    for t in range(3):
        a(f's_add_u32 s50, s48, {t}')
        a('s_mul_i32 s51, s50, 57')
        a('s_lshr_b32 s51, s51, 9')
        a(f's_mul_i32 s51, s51, {144 * 9 - 9}')
        a('s_add_u32 s50, s50, s51')
        a('s_add_u32 s50, s50, s49')
        a('s_lshl_b32 s50, s50, 10')
        a(f's_add_u32 s{52 + t}, s50, {WS_U}')
        a(f's_add_u32 s{55 + t}, s50, {WS_U + 9216}')
    a('s_mul_i32 s58, s62, 6')
    a('s_add_u32 s58, s58, s63')
    a('s_lshl_b32 s58, s58, 3')
    a('s_add_u32 s58, s58, s3')
    a('s_lshl_b32 s58, s58, 7')
    a(f's_add_u32 s58, s58, {WS_FLG + FL_U}')
    init = [f's_mov_b32 s24, {G1_W0 + WS0 * WTILE}', f's_mov_b32 s4, {G1_ACT}']
    adv = [f's_add_u32 s24, s24, {WTILE}', f's_add_u32 s4, s4, {G1_ACT}', f's_cmp_eq_u32 s24, {G1_WEND}',
           f's_cselect_b32 s24, {G1_W0}, s24', 's_cselect_b32 s4, 0, s4']
    if NW1 != 5:
        adv = adv[:4] + [f's_cmp_eq_u32 s4, {5 * G1_ACT}', 's_cselect_b32 s4, 0, s4']
    consumer_loop(k, a, 'g1', G1_STAGES, init, adv, 4, 3, WA, [AAR], FA, FB, ACC, 1024,
                  lambda ks, t: (0, ks * 6144 + t * 256), False, 24, 4)
    a('s_mov_b32 s42, 0xffff0000')
    a('s_waitcnt vmcnt(0)')
    B = FA
    for m in range(4):
        for h in range(2):
            a(f'v_lshlrev_b32 v{B + 4 * m + 2 * h}, 16, v{BIAS + 2 * m + h}')
            a(f'v_and_b32 v{B + 4 * m + 2 * h + 1}, s42, v{BIAS + 2 * m + h}')
    C0 = -2.0 * math.sqrt(2.0 / math.pi) * LOG2E
    C1 = C0 * 0.044715
    T = FB
    KC0, KC1, K1 = T + 20, T + 22, T + 24
    for r, v in ((KC0, C0), (KC1, C1), (K1, 1.0)):
        a(f'v_mov_b32 v{r}, {f32(v)}')
        a(f'v_mov_b32 v{r + 1}, {f32(v)}')
    pr = lambda r: f'v[{r}:{r + 1}]'
    for t in range(3):
        for p in range(2):
            o = FB + 12 + 4 * ((t * 2 + p) % 2)
            prs = [(ACC + 4 * ((2 * p + mm) * 3 + t) + 2 * h, B + 4 * (2 * p + mm) + 2 * h, T + 4 * mm + 2 * h)
                   for mm in range(2) for h in range(2)]
            for x, b, y in prs:
                a(f'v_pk_add_f32 {pr(x)}, {pr(x)}, {pr(b)}')
            for x, b, y in prs:
                a(f'v_pk_mul_f32 {pr(y)}, {pr(x)}, {pr(x)}')
            for x, b, y in prs:
                a(f'v_pk_fma_f32 {pr(y)}, {pr(y)}, {pr(KC1)}, {pr(KC0)}')
            for x, b, y in prs:
                a(f'v_pk_mul_f32 {pr(y)}, {pr(y)}, {pr(x)}')
            for i in range(8):
                a(f'v_exp_f32 v{T + i}, v{T + i}')
            for x, b, y in prs:
                a(f'v_pk_add_f32 {pr(y)}, {pr(y)}, {pr(K1)}')
            for i in range(8):
                a(f'v_rcp_f32 v{T + i}, v{T + i}')
            for x, b, y in prs:
                a(f'v_pk_mul_f32 {pr(x)}, {pr(x)}, {pr(y)}')
            for i, (x, b, y) in enumerate(prs):
                a(f'v_cvt_pk_bf16_f32 v{o + i}, v{x}, v{x + 1}')
            a(f'buffer_store_dwordx4 v[{o}:{o + 3}], v{A_L16}, {sq(SWS)}, s{(52 if p == 0 else 55) + t} offen sc1')
    if OPT.get('hint2'):
        a('v_mov_b32 v3, 1')
        a('s_mov_b64 exec, 1')
        a(f'buffer_store_dword v3, off, {sq(SWS)}, s58 offset:4 sc1')
        a('s_mov_b64 exec, -1')
    if not OPT.get('udef'):
        a('v_mov_b32 v3, 1')
        a('s_waitcnt vmcnt(0)')
        a('s_mov_b64 exec, 1')
        a(f'buffer_store_dword v3, off, {sq(SWS)}, s58 sc1')
        a('s_mov_b64 exec, -1')
    k.mark('g1out')
    if OPT.get('ubar', 1):
        a('s_barrier')


def g2_order(q):
    fts = list(range(9))
    if OPT.get('ord2', 1):
        fts = [f for f in fts if (9 * q + f) % 4 != 1] + [f for f in fts if (9 * q + f) % 4 == 1]
    return sum(f << (4 * i) for i, f in enumerate(fts))


def late_poison(a):
    NS2 = OPT.get('sp2', 0)
    if not NS2:
        return
    nt = (NS2 + 1) // 2
    c = 2 if nt <= 3 else 3
    wpt = 36 // c
    assert 16 * nt * wpt <= 223 * 4
    for i in range(4):
        a(f'v_mov_b32 v{28 + i}, -1')
    a('s_sub_u32 s50, s2, 33')
    a('s_lshl_b32 s50, s50, 2')
    a('s_add_u32 s50, s50, s39')
    a(f's_cmp_lt_u32 s50, {16 * nt * wpt}')
    a('s_cbranch_scc0 f_noup')
    sdiv(a, 44, 45, 50, nt * wpt)
    sdiv(a, 46, 47, 45, wpt)
    tab = 0
    for q in range(4):
        for j in range(nt):
            tab |= (g2_order(q) >> (4 * j) & 15) << (4 * (4 * q + j))
    a(f's_mov_b32 s50, {tab & 0xffffffff:#x}')
    a(f's_mov_b32 s51, {tab >> 32:#x}')
    a('s_and_b32 s45, s44, 12')
    a('s_add_u32 s45, s45, s46')
    a('s_lshl_b32 s45, s45, 2')
    a('s_lshr_b64 s[50:51], s[50:51], s45')
    a('s_and_b32 s50, s50, 15')
    a('s_lshr_b32 s45, s44, 2')
    a('s_mul_i32 s45, s45, 9')
    a('s_add_u32 s50, s50, s45')
    a('s_and_b32 s44, s44, 3')
    a('s_mul_i32 s44, s44, 36')
    a('s_add_u32 s50, s50, s44')
    a('s_mul_i32 s50, s50, 36864')
    a(f's_mul_i32 s47, s47, {1024 * c}')
    a('s_add_u32 s50, s50, s47')
    a(f's_add_u32 s50, s50, {WS_U}')
    for i in range(c):
        a(f'buffer_store_dwordx4 v[28:31], v{A_L16}, {sq(SWS)}, s50 offen offset:{1024 * i} sc1')
    a.label('f_noup')


def order_table(a):
    for q in range(4):
        t = g2_order(q)
        if q:
            a(f's_cmp_eq_u32 s44, {q}')
            a(f's_cselect_b32 s6, {t & 0xffffffff:#x}, s6')
            a(f's_cselect_b32 s7, {t >> 32}, s7')
        else:
            a(f's_mov_b32 s6, {t & 0xffffffff:#x}')
            a(f's_mov_b32 s7, {t >> 32}')


def pf_w2b(a, sj, nw, first, last, depth):
    a('s_lshr_b32 s44, s36, 1')
    order_table(a)
    a('s_and_b32 s51, s36, 1')
    a('s_lshl_b32 s51, s51, 11')
    a(f's_mul_i32 s52, s44, {1152 * 4096}')
    a('s_add_u32 s51, s51, s52')
    a(f's_add_u32 s52, {first}, s{sj}')
    a('v_lshrrev_b32 v2, 4, v1')
    a('v_lshlrev_b32 v2, 12, v2')
    a('v_and_b32 v3, 15, v1')
    a('v_lshl_add_u32 v2, v3, 7, v2')
    n = last - first
    reps = (n + nw - 1) // nw
    dl = OPT.get('pf2dl', 99)
    for r in range(reps):
        if (r + 1) * nw > n:
            lab = a.newlabel('pfskip')
            a(f's_cmp_lt_u32 s{sj}, {n - r * nw}')
            a(f's_cbranch_scc0 {lab}')
        a('s_lshr_b32 s53, s52, 5')
        a('s_lshl_b32 s53, s53, 2')
        a('s_lshr_b64 s[54:55], s[6:7], s53')
        a('s_and_b32 s54, s54, 15')
        a('s_lshl_b32 s54, s54, 5')
        a('s_and_b32 s53, s52, 31')
        a('s_add_u32 s54, s54, s53')
        a('s_lshl_b32 s54, s54, 14')
        a('s_add_u32 s54, s54, s51')
        if r >= depth and r < dl:
            a(f's_waitcnt vmcnt({(depth - 1) * len(tpair("tpw"))})')
            if OPT.get('pf2gap'):
                a(f's_sleep {OPT["pf2gap"]}')
        for sfx in tpair('tpw'):
            a(f'buffer_load_dword v4, v2, {sq(SW2)}, s54 offen' + sfx)
        if (r + 1) * nw > n:
            a.label(lab)
        else:
            a(f's_add_u32 s52, s52, {nw}')
    a('s_waitcnt vmcnt(0)')


def g2_loader(k):
    a = k.a
    g2_ids(a)
    pitch = S * 2
    w_lane(a, pitch)
    a(f's_mul_i32 s52, s44, {1152 * 4096}')
    a('s_lshl_b32 s50, s45, 8')
    a('s_add_u32 s52, s52, s50')
    a(f's_mul_i32 s50, s39, {16 * pitch}')
    a('s_add_u32 s52, s52, s50')
    a('s_mul_i32 s53, s46, 144')
    a('s_mul_i32 s50, s44, 36')
    a('s_add_u32 s53, s53, s50')
    a('s_mul_i32 s53, s53, 9216')
    a('s_mul_i32 s4, s39, 4608')
    a('s_add_u32 s53, s53, s4')
    a(f's_add_u32 s53, s53, {WS_U}')
    a(f's_add_u32 s4, s4, {G2_A0}')
    a('s_lshl_b32 s24, s39, 12')
    order_table(a)
    a('v_min_u32 v2, 35, v1')
    a('v_and_b32 v3, 1, v2')
    a('s_mul_i32 s50, s46, 3')
    a('s_and_b32 s51, s39, 1')
    a('s_add_u32 s50, s50, s51')
    a('v_add_u32 v3, s50, v3')
    a('v_and_b32 v4, 60, v2')
    a('v_lshrrev_b64 v[12:13], v4, s[6:7]')
    a('v_and_b32 v4, 15, v12')
    a('v_mul_u32_u24 v4, 6, v4')
    a('v_lshrrev_b32 v7, 1, v3')
    a('v_add_u32 v4, v4, v7')
    a('v_and_b32 v3, 1, v3')
    a('v_lshlrev_b32 v3, 1, v3')
    a('v_bfe_u32 v2, v2, 1, 1')
    a('v_add_u32 v3, v3, v2')
    a('v_lshlrev_b32 v3, 7, v3')
    a('v_lshl_add_u32 v2, v4, 10, v3')
    a(f's_mul_i32 s50, s44, {54 * 1024}')
    a(f's_add_u32 s50, s50, {WS_FLG + FL_U}')
    a('s_cmp_lt_u32 s2, 216')
    a('s_cbranch_scc0 g2_ld_nobar')
    a('s_barrier')
    a.label('g2_ld_nobar')

    def zsel(t, sel=3):
        if t % 2 == 0:
            j = t // 2
            a(f's_bfe_u32 s5, s{6 + j // 8}, {(4 << 16) | (4 * (j % 8)):#x}')
            if sel & 1:
                a(f's_mul_i32 s57, s5, {128 * pitch * (not OPT.get("yv"))}')
                a('s_add_u32 s57, s57, s52')
            if sel & 2:
                a(f's_mul_i32 s58, s5, {36864 * (not OPT.get("yh"))}')
                a('s_add_u32 s58, s58, s53')

    def w(t):
        a(f's_add_u32 m0, s24, {(t % NW2) * G2_WST}')
        for j in range(4):
            off = (t % 2) * 64 * pitch + j * (4 * pitch - 1024)
            so = 's57'
            if off:
                so = f's{25 + j % 3}'
                a(f's_add_u32 {so}, s57, {off}')
            a(f'buffer_load_dwordx4 v{(VLO, VHI)[j & 1]}, {sq(SW2)}, {so} offen offset:{1024 * j}' + pol('p_w2') + ' lds')

    NS = OPT.get('sp2', 0)
    q = []

    def act(t, sfx=None):
        if NS and t == NS:
            i = q.index('fl')
            a(f's_waitcnt vmcnt({len(q) - 1 - i})')
            a('v_cmp_ne_u32 vcc, 0, v3')
            a('s_lshr_b64 s[54:55], vcc, s56')
        if t >= NS and sfx is None:
            stage_check(a, OPT.get('usl2', 2))
            if t == 0:
                k.mark('g2go')
                k.markv('xn', 51)
        a(f's_add_u32 m0, s4, {(t % G2_NST) * G2_AST}')
        so = 's58'
        if sfx:
            so = 's59'
            j = t // 2
            a(f's_bfe_u32 s59, s{6 + j // 8}, {(4 << 16) | (4 * (j % 8)):#x}')
            a('s_mul_i32 s59, s59, 36864')
            a('s_add_u32 s59, s59, s53')
            if t % 2:
                a('s_add_u32 s59, s59, 18432')
            a('s_mov_b64 s[48:49], exec')
            a('s_mov_b32 exec_hi, 0')
        else:
            if t % 2:
                so = 's59'
                a('s_add_u32 s59, s58, 18432')
            a('s_mov_b64 exec, 0xffffffff')
        p = sfx or pol('p_u' if t >= NS else 'p_sp2')
        a(f'buffer_load_dwordx4 v{A_L16}, {sq(SWS)}, {so} offen' + p + ' lds')
        a('s_mov_b64 exec, ' + ('s[48:49]' if sfx else '-1'))
        for j in range(4):
            a(f'buffer_load_dwordx4 v{A_L16}, {sq(SWS)}, {so} offen offset:{512 + 1024 * j}' + p + ' lds')
        if not sfx:
            q.extend([t] * 5)

    def first_poll():
        a(f'buffer_load_dword v3, v2, {sq(SWS)}, s50 offen sc1')
        q.append('fl')

    for t in range(NPRE2):
        zsel(t, 1)
        w(t)
        q.extend([t] * 4)
    if OPT.get('g2t'):
        if OPT.get('g2ty'):
            a(f's_cmp_ge_u32 s37, {OPT["g2ty"]}')
            a('s_cbranch_scc0 g2_notch')
        if OPT.get('g2tsl'):
            a(f's_sleep {OPT["g2tsl"]}')
        a('v_lshrrev_b32 v4, 1, v1')
        a(f'v_mul_u32_u24 v4, {pitch}, v4')
        a('v_and_b32 v5, 1, v1')
        a('v_lshl_add_u32 v4, v5, 7, v4')
        a('s_lshl_b32 s48, s46, 2')
        a('s_add_u32 s48, s48, s39')
        a(f's_add_u32 s48, s48, {2 * NPRE2}')
        a(f's_mul_i32 s47, s39, {16 * pitch}')
        a('s_sub_u32 s47, s52, s47')
        for r in range(OPT['g2t']):
            if r:
                a('s_add_u32 s48, s48, 16')
                a('s_cmp_lt_u32 s48, 36')
                a('s_cbranch_scc0 g2_notch')
            a('s_and_b32 s49, s48, 60')
            a('s_lshr_b64 s[58:59], s[6:7], s49')
            a('s_and_b32 s58, s58, 15')
            a('s_lshl_b32 s58, s58, 2')
            a('s_and_b32 s49, s48, 3')
            a('s_add_u32 s58, s58, s49')
            a(f's_mul_i32 s58, s58, {32 * pitch}')
            a('s_add_u32 s58, s58, s47')
            a(f'buffer_load_dword v{5 + r}, v4, {sq(SW2)}, s58 offen')
        a.label('g2_notch')
    if NS:
        a('v_and_b32 v16, 31, v1')
        a('v_lshl_add_u32 v16, v16, 4, s4')
        a(f'v_add_u32 v17, s4, v{A_L16}')
    early = OPT.get('uearly', 0)
    if early:
        if OPT.get('uesl'):
            a(f's_sleep {OPT["uesl"]}')
        for t in range(3):
            zsel(t)
            act(t)
        a('s_waitcnt vmcnt(0)')
        for t in range(3):
            a(f'v_add_u32 v18, {t * G2_SLOT}, v16')
            a(f'v_add_u32 v19, {t * G2_SLOT}, v17')
            for i in range(5):
                r = 24 + 20 * t + 4 * i
                a(f'ds_read_b128 v[{r}:{r + 3}], v{19 if i else 18} offset:{512 + 1024 * (i - 1) if i else 0}')
        for i in range(15):
            r = 24 + 4 * i
            a(f's_waitcnt lgkmcnt({14 - i})')
            a(f'v_max3_u32 v{r}, v{r}, v{r + 1}, v{r + 2}')
            a(f'v_max3_u32 v{r}, v{r}, v{r + 3}, v{r - 4 if i else r}')
        a('v_cmp_eq_u32 s[46:47], -1, v80')
    US = OPT.get('uslow', 0)
    if US:
        assert not NS and not early
        a('s_and_b32 s47, s62, 3')
        a('s_cmp_ge_u32 s2, 216')
        a('s_cselect_b32 s47, 0, s47')
        a('s_cmp_eq_u32 s47, 1')
        a('s_cbranch_scc0 g2_ld_fast')
        if US > 1:
            a(f's_sleep {US}')
        a('s_branch g2_ld_slow')
        a.label('g2_ld_fast')
    if OPT.get('ubar', 1):
        a('s_cmp_lt_u32 s2, 216')
        a('s_cbranch_scc0 g2_ld_nobar2')
        a('s_barrier')
        if NS and OPT.get('spg', 3):
            if OPT.get('usl'):
                a(f's_sleep {OPT["usl"]}')
            a('s_branch g2_ld_go')
        a.label('g2_ld_nobar2')
        if NS and OPT.get('spg', 3):
            a(f's_mov_b64 exec, {(1 << 2 * OPT.get("spg", 3)) - 1:#x}')
            flag_poll(a, 'g2_spg', 2, 's50', 51, OPT.get('usl3', 4))
            a.label('g2_ld_go')
    if early:
        a('s_and_b64 exec, s[46:47], s[46:47]')
        a('s_cbranch_scc0 g2_early_ok')
    if OPT.get('usl') and not (NS and OPT.get('spg', 3) and OPT.get('ubar', 1)):
        a(f's_sleep {OPT["usl"]}')
    if OPT.get('hint2'):
        a(f's_mov_b64 exec, {(1 << 2 * OPT["hint2"]) - 1:#x}')
        flag_poll(a, 'g2_hint', 2, 's50', 51, OPT.get('usl3', 2), 4)
        if OPT.get('usl4'):
            a(f's_sleep {OPT["usl4"]}')
    if early:
        for t in range(3):
            act(t, ' sc1')
        a.label('g2_early_ok')
        a('s_mov_b64 exec, -1')
    if OPT.get('spw'):
        a('s_cmp_lt_u32 s2, 216')
        a('s_cbranch_scc1 g2_ld_spw')
        a(f's_mov_b64 exec, {(1 << 2 * OPT["spw"]) - 1:#x}')
        flag_poll(a, 'g2_spw', 2, 's50', 51, OPT.get('usl3', 4))
        a.label('g2_ld_spw')
    if US:
        a.label('g2_ld_slow')
    a('s_mov_b64 s[54:55], 0')
    a(f's_mov_b32 s56, {2 * NS}')
    k.mark('xst')
    for t in range(3):
        if not early:
            zsel(t, 2)
            act(t)
    if US:
        a('s_cmp_eq_u32 s47, 1')
        a('s_cbranch_scc0 g2_ld_fast2')
        a('s_barrier')
        a.label('g2_ld_fast2')
    fp = OPT.get('spfp2', NS - 4)
    if NS and fp < 0:
        first_poll()
    pend = []
    for t in range(G2_STAGES):
        last = max(i for i, u in enumerate(q) if u not in ('fl', 'fr') and u <= t)
        a(f's_waitcnt vmcnt({len(q) - 1 - last})')
        if pend and pend[0] < last:
            pend.pop(0)
            refresh_merge(a)
        if t < NS:
            so = (t % G2_NST) * G2_AST
            a(f'v_add_u32 v18, {so}, v16')
            a(f'v_add_u32 v19, {so}, v17')
            validate(a, [18, 19, 19, 19, 19], [0] + [512 + 1024 * j for j in range(4)], lambda: act(t, ' sc1'), 51, OPT.get('spsl2', 2))
            if t == 0:
                k.mark('g2go')
                k.markv('xn', 51)
        a('s_barrier')
        if NS and t == fp:
            first_poll()
        if OPT.get('rf2', 0) >> t & 1:
            refresh_issue(a)
            q.append('fr')
            pend.append(len(q) - 1)
        u, uw = t + 3, t + NW2 - 1
        if NPRE2 <= uw < G2_STAGES:
            zsel(uw, 1)
            w(uw)
            q.extend([uw] * 4)
        if u < G2_STAGES:
            zsel(u, 2)
            act(u)
    k.mark('g2end')


def g2_consumer(k):
    a = k.a
    g2_ids(a)
    WA, AAR, FA, FB, ACC = 8, 10, 24, 68, 128
    X1R, GBR, B2R = 200, 210, 230
    VROW = 22
    a('s_lshr_b32 s47, s44, 1')
    a('s_and_b32 s48, s44, 1')
    a('s_lshl_b32 s40, s3, 1')
    a('s_add_u32 s40, s40, s47')
    a('s_xor_b32 s41, s40, 1')
    w_addr_setup(a, WA, 2, 40, 4)
    a('s_lshl_b32 s42, s48, 12')
    a(f's_add_u32 s43, s42, {G2_A0}')
    a(f'v_add_u32 v{AAR}, s43, v{A_L16}')
    a('s_xor_b32 s43, s43, 4096')
    a(f'v_add_u32 v{AAR + 1}, s43, v{A_L16}')
    a(f'v_add_u32 v{AAR + 2}, {G2_A0 + 8192}, v{A_L16}')
    a('s_lshl_b32 s49, s45, 3')
    a('s_add_u32 s49, s49, s40')
    a('s_lshl_b32 s49, s49, 4')
    a('v_add_u32 v2, s49, v5')
    a(f'v_mov_b32 v{B2R}, 0')
    a('v_lshlrev_b32 v3, 1, v2')
    a(f'buffer_load_short_d16_hi v{B2R}, v3, {sq(SB2)}, 0 offen')
    a('v_mul_u32_u24 v2, 1152, v2')
    a(f'v_lshl_add_u32 v{VROW}, v6, 3, v2')
    a('s_mul_i32 s49, s46, 288')
    a('s_lshl_b32 s52, s48, 7')
    a('s_add_u32 s52, s52, s49')
    a('s_lshl_b32 s53, s48, 2')
    a('s_add_u32 s53, s53, s49')
    a('s_add_u32 s53, s53, 256')
    a(f's_add_u32 s54, s52, {WS_X1}')
    a(f's_add_u32 s55, s53, {WS_X1}')
    a('v_lshlrev_b32 v3, 4, v6')
    a('s_lshl_b32 s56, s52, 1')
    a(f's_add_u32 s56, s56, {WS_MOD + 5 * 2304}')
    a('s_lshl_b32 s57, s53, 1')
    a(f's_add_u32 s57, s57, {WS_MOD + 5 * 2304}')

    def act_off(ks, t):
        if t < 4:
            return 0, ks * 9216 + t * 1024
        if t < 8:
            return 1, ks * 9216 + (t - 4) * 1024
        return 2, ks * 9216

    MSG = (112, 232, 244)
    for o in MSG:
        for g in range(3):
            a(f'v_mov_b32 v{o + 4 * g + 3}, s26')
    a('s_lshl_b32 s50, s46, 4')
    a('s_add_u32 s50, s50, s45')
    a('s_lshl_b32 s50, s50, 2')
    a('s_add_u32 s50, s50, s3')
    a('s_lshl_b32 s50, s50, 4')
    WS_PART = 's49'
    if OPT.get('rotx'):
        a('s_bfe_u32 s49, s26, 0x30008')
        a('s_lshl_b32 s49, s49, 24')
        a('s_add_u32 s49, s49, 0x5000000')
    else:
        WS_PART = 0x1800000
    for x in (1, 2, 3):
        a(f's_xor_b32 s51, s44, {x}')
        a(f's_lshl_b32 s{60 + x}, s51, 2')
        a(f's_add_u32 s{60 + x}, s{60 + x}, s44')
        a(f's_add_u32 s{60 + x}, s{60 + x}, s50')
        a(f's_mul_i32 s{60 + x}, s{60 + x}, {PART_MSG}')
        a(f's_add_u32 s{60 + x}, s{60 + x}, {WS_PART}')
        a(f's_lshl_b32 s{4 + x}, s44, 2')
        a(f's_add_u32 s{4 + x}, s{4 + x}, s51')
        a(f's_add_u32 s{4 + x}, s{4 + x}, s50')
        a(f's_mul_i32 s{4 + x}, s{4 + x}, {PART_MSG}')
        a(f's_add_u32 s{4 + x}, s{4 + x}, {WS_PART}')
    if OPT.get('xsc') is not None:
        a('v_mov_b32 v23, s5')
        a('v_writelane_b32 v23, s6, 1')
        a('v_writelane_b32 v23, s7, 2')
    init = ['s_mov_b32 s24, 0']
    adv = [f's_add_u32 s24, s24, {G2_SLOT}', f's_cmp_eq_u32 s24, {G2_SLOT * G2_NST}', 's_cselect_b32 s24, 0, s24']
    SA2 = 24
    if NW2 != 4:
        SA2 = 4
        init = ['s_mov_b32 s24, 0', 's_mov_b32 s4, 0']
        adv = [f's_add_u32 s24, s24, {G2_WST}', f's_cmp_eq_u32 s24, {G2_WST * NW2}', 's_cselect_b32 s24, 0, s24',
               f's_add_u32 s4, s4, {G2_AST}', f's_cmp_eq_u32 s4, {G2_AST * G2_NST}', 's_cselect_b32 s4, 0, s4']
    NT = OPT.get('g2h', 0)
    if NT:
        tb = [g2_order(q) >> 20 & 0xffff for q in range(4)]
        a(f's_mov_b32 s42, {tb[0] | tb[1] << 16:#x}')
        a(f's_mov_b32 s43, {tb[2] | tb[3] << 16:#x}')
        a('s_lshl_b32 s58, s46, 2')
        a('s_add_u32 s58, s58, s3')
        a(f's_add_u32 s58, s58, {16 - 4 * NT}')
        a('s_lshl_b32 s51, s44, 4')
        a('s_and_b32 s49, s58, 12')
        a('s_add_u32 s51, s51, s49')
        a('s_lshr_b64 s[42:43], s[42:43], s51')
        a('s_and_b32 s42, s42, 15')
        a('s_lshl_b32 s42, s42, 2')
        a('s_and_b32 s49, s58, 3')
        a('s_add_u32 s42, s42, s49')
        a('s_lshl_b32 s42, s42, 17')
        a(f's_mul_i32 s43, s44, {1152 * 4096}')
        a('s_add_u32 s42, s42, s43')
        a('s_lshl_b32 s43, s45, 8')
        a('s_add_u32 s42, s42, s43')
        a('v_lshrrev_b32 v13, 1, v1')
        a('v_lshlrev_b32 v13, 12, v13')
        a('v_and_b32 v21, 1, v1')
        a('v_lshl_add_u32 v13, v21, 7, v13')
        a('v_add_u32 v13, s42, v13')
    a('s_cmp_lt_u32 s2, 216')
    a('s_cbranch_scc0 g2_late_ops')

    def late():
        for t in range(4):
            a(f'buffer_load_dwordx2 v[{X1R + 2 * t}:{X1R + 2 * t + 1}], v{VROW}, {sq(SWS)}, s54 offen offset:{32 * t}')
        a(f'buffer_load_dword v{X1R + 8}, v{VROW}, {sq(SWS)}, s55 offen')
        for t in range(4):
            a(f'buffer_load_dwordx4 v[{GBR + 4 * t}:{GBR + 4 * t + 3}], v3, {sq(SWS)}, s56 offen offset:{64 * t}')
        a(f'buffer_load_dwordx2 v[{GBR + 16}:{GBR + 17}], v3, {sq(SWS)}, s57 offen')
        pt = OPT.get('ptouch', 0)
        if pt:
            a('s_mov_b64 exec, 1')
            for x in (1, 2, 3):
                if pt & 1:
                    a(f'buffer_load_dword v23, v{A_L16}, {sq(SWS)}, s{60 + x} offen sc1')
                if pt & 2:
                    a(f'buffer_load_dword v23, v{A_L16}, {sq(SWS)}, s{4 + x} offen sc1')
            if pt & 4:
                a(f'buffer_load_dword v21, v{VROW}, {sq(SOUT)}, s52 offen sc1')
            if pt & 8:
                a('s_mul_i32 s51, s44, 5')
                a('s_add_u32 s51, s51, s50')
                a(f's_mul_i32 s51, s51, {PART_MSG}')
                a(f's_add_u32 s51, s51, {WS_PART}')
                a(f'buffer_load_dword v21, off, {sq(SWS)}, s51')
            a('s_mov_b64 exec, -1')
    late()
    a.label('g2_late_ops')

    def hook():
        a('s_cmp_lt_u32 s2, 216')
        a('s_cbranch_scc1 g2_late_done')
        late()
        a.label('g2_late_done')
        if NT:
            a('s_cmp_lt_u32 s58, 16')
            a('s_cbranch_scc0 g2_no_touch')
            a(f'buffer_load_dword v21, v13, {sq(SW2)}, 0 offen')
            a.label('g2_no_touch')
    def post():
        a(f's_cmp_eq_u32 s59, s25')
        a('s_cbranch_scc0 g2_nopost')
        a('v_mov_b32 v23, 1')
        a(f's_waitcnt vmcnt(11)')
        a('s_mov_b64 exec, 1')
        a(f'buffer_store_dword v23, off, {sq(SWS)}, s58 sc1')
        a('s_mov_b64 exec, -1')
        a.label('g2_nopost')
    if OPT.get('udef'):
        a('s_cmp_lt_u32 s2, 216')
        a(f's_cselect_b32 s25, {G2_STAGES - OPT["udef"]}, 0')
    consumer_loop(k, a, 'g2', G2_STAGES, init, adv, 2, 9, WA, [AAR, AAR + 1, AAR + 2], FA, FB, ACC, 4096,
                  act_off, True, 24, SA2, hook, post if OPT.get('udef') else None)
    acc = lambda m, t: ACC + 4 * (m * 9 + t)
    a('s_cmp_eq_u32 s48, 1')
    a('s_cbranch_scc0 g2_noswap')
    for m in range(2):
        for i in range(2):
            a(f'v_swap_b32 v{acc(m, 8) + i}, v{acc(m, 8) + 2 + i}')
    a.label('g2_noswap')
    gq = lambda o, d: o + 4 * (d // 3) + d % 3
    for x, (m, t0, zo) in ((1, (0, 4, 2)), (2, (1, 0, 0)), (3, (1, 4, 2))):
        o = MSG[x - 1]
        src = [acc(m, t0 + t) + 2 * h for t in range(4) for h in range(2)] + [acc(m, 8) + zo]
        for g in range(3):
            for d in range(3 * g, 3 * g + 3):
                a(f'v_cvt_pk_bf16_f32 v{gq(o, d)}, v{src[d]}, v{src[d] + 1}')
            a(f'buffer_store_dwordx4 v[{o + 4 * g}:{o + 4 * g + 3}], v{A_L16}, {sq(SWS)}, s{60 + x} offen offset:{1024 * g} sc1')
    a('s_mov_b32 s42, 0xffff0000')
    own = [acc(0, t) + i for t in range(4) for i in range(4)] + [acc(0, 8), acc(0, 8) + 1]
    T = FA
    a('s_waitcnt vmcnt(9)')
    for r in own:
        a(f'v_add_f32 v{r}, v{r}, v{B2R}')
    for d in range(9):
        a(f'v_lshlrev_b32 v{T + 8 + 2 * d}, 16, v{X1R + d}')
        a(f'v_and_b32 v{T + 9 + 2 * d}, s42, v{X1R + d}')
    k.mark('xst')
    if OPT.get('xdr', 1):
        a('s_waitcnt vmcnt(0)')
    k.mark('xdr')
    if OPT.get('xsl'):
        a(f's_sleep {OPT["xsl"]}')
    a('s_mov_b32 s49, 0')

    def msg(x):
        o = FB + 12 * (x - 1)
        for g in range(3):
            a(f'buffer_load_dwordx4 v[{o + 4 * g}:{o + 4 * g + 3}], v{A_L16}, {sq(SWS)}, s{4 + x} offen offset:{1024 * g} sc1')
    if OPT.get('xsc') is not None:
        a('s_mov_b64 s[40:41], 7')
        a.label('g2_scout')
        a('s_mov_b64 exec, s[40:41]')
        a(f'buffer_load_dword v2, v23, {sq(SWS)}, 0 offen offset:{OPT["xsc"] + 12} sc1')
        a('s_add_u32 s49, s49, 1')
        a('s_waitcnt vmcnt(0)')
        a('v_cmp_eq_u32 vcc, s26, v2')
        a('s_mov_b64 exec, -1')
        if OPT.get('xsl3'):
            a('s_cbranch_vccz g2_scn')
            a(f's_sleep {OPT["xsl3"]}')
            a.label('g2_scn')
        for x in (1, 2, 3):
            a(f's_bitcmp1_b32 vcc_lo, {x - 1}')
            a(f's_cbranch_scc0 g2_sc{x}')
            msg(x)
            a.label(f'g2_sc{x}')
        a('s_andn2_b32 s40, s40, vcc_lo')
        a('s_cbranch_scc0 g2_check')
        if OPT.get('xsl2'):
            a(f's_sleep {OPT["xsl2"]}')
        a(f's_cmp_lt_u32 s49, {POLL_MAX}')
        a('s_cbranch_scc1 g2_scout')
    a.label('g2_poll')
    for x in (1, 2, 3):
        msg(x)
    a('s_add_u32 s49, s49, 1')
    a.label('g2_check')
    a('s_waitcnt vmcnt(0)')
    tg = [FB + 4 * i + 3 for i in range(9)]
    for i in range(9):
        a(f'v_xor_b32 v{T + i % 8 if i < 8 else 2}, s26, v{tg[i]}')
    a(f'v_or3_b32 v{T}, v{T}, v{T + 1}, v{T + 2}')
    a(f'v_or3_b32 v{T + 3}, v{T + 3}, v{T + 4}, v{T + 5}')
    a(f'v_or3_b32 v{T + 6}, v{T + 6}, v{T + 7}, v2')
    a(f'v_or3_b32 v{T}, v{T}, v{T + 3}, v{T + 6}')
    a(f'v_cmp_ne_u32 vcc, 0, v{T}')
    a('s_and_b64 exec, vcc, vcc')
    a('s_cbranch_scc0 g2_ready')
    if OPT.get('xsl2'):
        a(f's_sleep {OPT["xsl2"]}')
    a(f's_cmp_lt_u32 s49, {POLL_MAX}')
    a('s_cbranch_scc1 g2_poll')
    a.label('g2_ready')
    a('s_mov_b64 exec, -1')
    k.mark('g2rdy')
    k.markv('xn', 49)
    for x in (1, 2, 3):
        o = FB + 12 * (x - 1)
        for d in range(9):
            tt = T + 2 * (d % 2)
            a(f'v_lshlrev_b32 v{tt}, 16, v{gq(o, d)}')
            a(f'v_and_b32 v{tt + 1}, s42, v{gq(o, d)}')
            a(f'v_pk_add_f32 v[{own[2 * d]}:{own[2 * d] + 1}], v[{own[2 * d]}:{own[2 * d] + 1}], v[{tt}:{tt + 1}]')
    for d in range(9):
        a(f'v_pk_fma_f32 v[{own[2 * d]}:{own[2 * d] + 1}], v[{own[2 * d]}:{own[2 * d] + 1}], v[{GBR + 2 * d}:{GBR + 2 * d + 1}], v[{T + 8 + 2 * d}:{T + 9 + 2 * d}]')
        a(f'v_cvt_pk_bf16_f32 v{FB + d}, v{own[2 * d]}, v{own[2 * d + 1]}')
        if d % 2:
            a(f'buffer_store_dwordx2 v[{FB + d - 1}:{FB + d}], v{VROW}, {sq(SOUT)}, s52 offen offset:{16 * (d - 1)}' + pol('p_out'))
    a(f'buffer_store_dword v{FB + 8}, v{VROW}, {sq(SOUT)}, s53 offen' + pol('p_out'))


def tail(k):
    a = k.a
    a('v_mov_b32 v3, 1')
    a('s_lshl_b32 s50, s38, 10')
    a(f's_add_u32 s50, s50, {WS_FLG + FL_H2}')
    a('s_barrier')
    a('s_cmp_eq_u32 s3, 0')
    a('s_cbranch_scc0 t_noflag')
    a('s_mov_b64 exec, 1')
    a(f'buffer_store_dword v3, off, {sq(SWS)}, s50 sc1')
    a('s_mov_b64 exec, -1')
    a.label('t_noflag')
    k.mark('fend')
    a('s_cmp_ge_u32 s2, 216')
    a('s_cbranch_scc1 t_spare')
    a('s_cmp_lt_u32 s3, 4')
    a('s_cbranch_scc1 t_cons')
    g1_loader(k)
    a.label('t_ld2')
    g2_loader(k)
    a('s_branch t_end')
    a.label('t_spare')
    if OPT.get('pfg1'):
        a('s_sub_u32 s50, s37, 27')
        a('s_lshl_b32 s50, s50, 3')
        a('s_add_u32 s50, s50, s3')
        for _ in range(OPT.get('t4sl', 0)):
            a('s_sleep 16')
        if OPT.get('t4l'):
            first, last = OPT.get('t4f', 0), min(OPT['t4l'], 341)
            n, step = last - first, 6 * F * 2
            a(f's_add_u32 s58, s50, {first}')
            a(f's_mul_i32 s58, s58, {step}')
            a('s_add_u32 s58, s58, s57')
            for r in range((n + 39) // 40):
                lab = a.newlabel('t4')
                a(f's_cmp_lt_u32 s50, {n - r * 40}')
                a(f's_cbranch_scc0 {lab}')
                if r >= OPT.get('t4d', 2):
                    a(f's_waitcnt vmcnt({(OPT.get("t4d", 2) - 1) * len(tpair("tp4"))})')
                for sfx in tpair('tp4'):
                    a(f'buffer_load_dword v8, v17, {sq(SW1)}, s58 offen' + sfx)
                a.label(lab)
                a(f's_add_u32 s58, s58, {40 * step}')
        for _ in range(OPT.get('pf2sl', 0)):
            a('s_sleep 16')
        a('s_waitcnt vmcnt(0)')
        if OPT.get('cpf2') == 1:
            a('s_mov_b32 s48, s50')
            code_touch(a, 'cpf2', 27, 1, 20, 't_ld2')
            a('s_mov_b32 s50, s48')
        if OPT.get('pf2rev'):
            a('s_sub_u32 s50, 39, s50')
        if OPT.get('pf2', 1) == 2:
            pf_w2b(a, 50, 40, OPT.get('pf2f', 48), OPT.get('pf2l', 288), OPT.get('pfg1depth', 1))
        if OPT.get('cpf2') == 2:
            code_touch(a, 'cpf2', 27, 1, 20, 't_ld2')
            a('s_waitcnt vmcnt(0)')
        if OPT.get('pf2', 1) == 1:
            pf_w2(a, 36, 50, 40, last=OPT.get('pf2l', 288), depth=OPT.get('pfg1depth', 1))
    a('s_cmp_lt_u32 s3, 4')
    a('s_cbranch_scc1 t_cons2')
    if OPT.get('sp2'):
        a('v_lshlrev_b32 v2, 10, v1')
        a(f's_mov_b32 s50, {WS_FLG + FL_H2}')
        a('s_mov_b32 s51, 0')
        a.label('t_allh2')
        for j in range(4):
            a(f'buffer_load_dword v{4 + j}, v2, {sq(SWS)}, s50 offen sc1')
            a(f's_add_u32 s50, s50, {65536 if j < 3 else -3 * 65536 & 0xffffffff:#x}')
        a('s_add_u32 s51, s51, 1')
        a('s_waitcnt vmcnt(0)')
        a('v_min_u32 v4, v4, v5')
        a('v_min3_u32 v4, v4, v6, v7')
        a('v_cmp_eq_u32 vcc, 0, v4')
        a('s_nop 1')
        a('s_cbranch_vccz t_ld2')
        a('s_sleep 4')
        a(f's_cmp_lt_u32 s51, {POLL_MAX}')
        a('s_cbranch_scc1 t_allh2')
    a('s_branch t_ld2')
    a.label('t_cons')
    g1_consumer(k)
    a.label('t_cons2')
    g2_consumer(k)
    a.label('t_end')


def pf_w2(a, sx, sj, nw, first=0, last=288, depth=None):
    a(f's_and_b32 s51, s{sx}, 1')
    a('s_lshl_b32 s51, s51, 11')
    a(f's_lshr_b32 s52, s{sx}, 1')
    a(f's_mul_i32 s52, s52, {1152 * 4096}')
    a('s_add_u32 s51, s51, s52')
    a(f's_add_u32 s52, {first}, s{sj}')
    a('s_lshl_b32 s52, s52, 14')
    a('s_add_u32 s52, s52, s51')
    a('v_lshrrev_b32 v2, 4, v1')
    a('v_lshlrev_b32 v2, 12, v2')
    a('v_and_b32 v3, 15, v1')
    a('v_lshl_add_u32 v2, v3, 7, v2')
    n = last - first
    reps = (n + nw - 1) // nw
    for r in range(reps):
        if (r + 1) * nw > n:
            lab = a.newlabel('pfskip')
            a(f's_cmp_lt_u32 s{sj}, {n - r * nw}')
            a(f's_cbranch_scc0 {lab}')
        if depth is not None and r >= depth:
            a(f's_waitcnt vmcnt({(depth - 1) * len(tpair("tpw"))})')
        for sfx in tpair('tpw'):
            a(f'buffer_load_dword v4, v2, {sq(SW2)}, s52 offen' + sfx)
        if (r + 1) * nw > n:
            a.label(lab)
        else:
            a(f's_add_u32 s52, s52, {nw << 14}')
    a('s_waitcnt vmcnt(0)')
```

```python
import os
import sys
sys.path.insert(0, os.path.dirname(os.path.abspath(__file__)))
from common import *

NAME = 'adaLN_cond__spectral_gfnet__mixer_token_mlp__prompt'
HERE = os.path.dirname(os.path.abspath(__file__))


def build(stamps=False, only=None):
    import k_pre, k_fft, k_gemm, k_front
    st = (lambda i: i) if stamps else (lambda i: None)
    ks = [k_pre.build_p0(st(0)), k_fft.build_p1(st(1)), k_fft.build_p2(st(2)), k_fft.build_p3(st(3)),
          k_gemm.build_g1(st(4)), k_gemm.build_g2(st(5))]
    if OPT.get('fused', 2) == 1:
        ks = [k_front.build_f(st(0)), k_gemm.build_g1(st(4)), k_gemm.build_g2(st(5))]
    if OPT.get('fused', 2) == 2:
        ks = [k_front.build_f(st(0))]
    if only is not None:
        ks = ks[:only]
    ref = open(os.path.join(HERE, '..', NAME + '.s.ref')).read().split('\n')
    head = [l for l in ref if l.startswith(';   offset') or l.startswith('; Kernarg')]
    out = head + [k.launch() for k in ks]
    out += ['.amdgcn_target "amdgcn-amd-amdhsa--gfx950"', '.text']
    for k in ks:
        out += k.text()
    for k in ks:
        out += k.desc()
    return '\n'.join(out) + '\n'


if __name__ == '__main__':
    stamps = '--stamps' in sys.argv
    dst = os.path.join(HERE, '..', NAME + '.s')
    for i, arg in enumerate(sys.argv):
        if arg == '-o':
            dst = sys.argv[i + 1]
        if arg.startswith('-D'):
            kv = arg[2:].split('=')
            OPT[kv[0]] = int(kv[1], 0) if len(kv) > 1 else 1
    txt = build(stamps)
    open(dst, 'w').write(txt)
    print('wrote', dst, len(txt), 'bytes', txt.count('\n'), 'lines')
```

```python
from common import *
from k_gemm import interleave, w_addr_setup, PART_MSG

WTILE = 16384
SWS, SW1, SW2, SB2, SOUT, SB1 = 28, 32, 8, 12, 16, 20
sq = lambda b: f's[{b}:{b + 3}]'
A_L4, A_L16 = 15, 14
VLO, VHI = 9, 10
POLL_MAX = 30000
FL_H2, FL_U = OPT.get('flh', 256), OPT.get('flu', 384)
NW1 = OPT.get('nw1', 5)
G1_W0, G1_WEND, G1_ACT = 163840 - NW1 * WTILE, 163840, 12288
NPRE = OPT.get('npre', 4 if NW1 == 5 else 6)
WS0 = 1 if NW1 == 5 else 0
NW2 = OPT.get('nw2', 4)
assert NW1 - 1 <= NPRE + WS0 <= NW1
G2_ACT = 18432
G2_WST, G2_A0, G2_AST = (WTILE + G2_ACT, WTILE, WTILE + G2_ACT) if NW2 == 4 else (WTILE, NW2 * WTILE, G2_ACT)
NPRE2 = OPT.get('npre2', 3 if NW2 == 4 else NW2)
assert NW2 - 1 <= NPRE2 <= NW2
G1_STAGES = 32
H2S = OPT.get('h2s', 0)
H2_BLK = 2048 if H2S else 1536
G1_GACT = 8 * H2_BLK
VH2 = 20
VFR = 23
BEARLY = 160


def h2_line(a, r, t, par):
    a(f'v_lshrrev_b32 v{t}, 3, v{r}')
    a(f'v_add_u32 v{t}, {par}, v{t}')
    a(f'v_and_b32 v{r}, 7, v{r}')
    a(f'v_lshlrev_b32 v{r}, 4, v{r}')
    a(f'v_lshl_add_u32 v{r}, v{t}, 7, v{r}')
    a(f'v_add_u32 v{t}, 4, v{t}')
    a(f'v_mul_u32_u24 v{t}, 37, v{t}')
    a(f'v_lshrrev_b32 v{t}, 8, v{t}')
    a(f'v_lshl_add_u32 v{r}, v{t}, 7, v{r}')


def h2_addr(a):
    a(f'v_mov_b32 v{VH2}, v1')
    h2_line(a, VH2, 2, 0)
    a(f'v_add_u32 v{VH2 + 2}, 32, v1')
    h2_line(a, VH2 + 2, 2, 2)
    a(f'v_and_b32 v{VH2 + 1}, 31, v1')
    a('v_cmp_gt_u32 vcc, 32, v1')
    a(f'v_add_u32 v3, 64, v{VH2 + 1}')
    a(f'v_cndmask_b32 v{VH2 + 1}, v{VH2 + 1}, v3, vcc')
    a('v_cndmask_b32 v3, 2, 0, vcc')
    h2_line(a, VH2 + 1, 2, 'v3')
    a(f'v_lshl_add_u32 v{VH2 + 1}, v3, 10, v{VH2 + 1}')
    a(f'v_subrev_u32 v{VH2 + 1}, 1024, v{VH2 + 1}')


def act_src(j):
    return VH2 + j if H2S else A_L16
G2_NST, G2_SLOT, G2_STAGES = 4, WTILE + 18432, 18


XR_RHO, XR_J, XR_W = {0: (1, 4, 16), 1: (16, 1, 4), 2: (4, 1, 16), 3: (2, 1, 16), 4: (8, 1, 16)}[OPT.get('xrow', 0)]


def code_touch(a, name, y0, wave, v, first='f_kernel'):
    a(f's_sub_u32 s50, s37, {y0}')
    a(f's_cbranch_scc1 {name}_no')
    a(f's_cmp_eq_u32 s3, {wave}')
    a(f's_cbranch_scc0 {name}_no')
    a('s_lshl_b32 s50, s50, 13')
    a(f's_add_u32 s50, s50, {first}-f_kernel')
    a(f'v_lshl_add_u32 v{v}, v1, 7, s50')
    a(f'v_min_u32 v{v}, f_end-f_kernel-4, v{v}')
    a('s_getpc_b64 s[50:51]')
    a.label(name + '_pc')
    a(f's_sub_u32 s50, s50, {name}_pc-f_kernel')
    a('s_subb_u32 s51, s51, 0')
    a(f'global_load_dword v{v + 1}, v{v}, s[50:51]')
    a.label(name + '_no')


def w_lane(a, pitch):
    a('v_lshrrev_b32 v2, 4, v1')
    a('v_and_b32 v3, 15, v1')
    a(f'v_lshlrev_b32 v{VLO}, 1, v2')
    a(f'v_xor_b32 v{VLO}, v{VLO}, v3')
    a(f'v_xor_b32 v{VHI}, 8, v{VLO}')
    a(f'v_mul_u32_u24 v2, {pitch}, v2')
    a(f'v_lshl_add_u32 v{VLO}, v{VLO}, 4, v2')
    a(f'v_lshl_add_u32 v{VHI}, v{VHI}, 4, v2')


def g1_ids(a):
    a('s_mul_i32 s63, s36, 27')
    a('s_add_u32 s63, s63, s37')
    a('s_mul_i32 s62, s63, 171')
    a('s_lshr_b32 s62, s62, 10')
    a('s_mul_i32 s60, s62, 6')
    a('s_sub_u32 s63, s63, s60')
    a('s_lshl_b32 s60, s62, 8')
    a(f's_mul_i32 s61, s39, {XR_W * F * 2}')
    a('s_add_u32 s60, s60, s61')
    a(f's_mul_i32 s61, s63, {256 * H2_BLK}')
    a(f's_mul_i32 s24, s39, {2 * H2_BLK}')
    a('s_add_u32 s61, s61, s24')
    a(f's_add_u32 s61, s61, {WS_H2}')
    if OPT.get('rot1', 1):
        a('s_lshl_b32 s24, s63, 4')
        a('s_add_u32 s24, s24, 1')
        a('s_mul_i32 s24, s24, 171')
        a('s_lshr_b32 s24, s24, 9')
        a(f's_mul_i32 s25, s24, {64 * F * 2}')
        a('s_add_u32 s60, s60, s25')
        a(f's_mul_i32 s25, s24, {G1_ACT}')
        a('s_add_u32 s61, s61, s25')
    a('s_lshl_b32 s24, s39, 12')
    a(f's_add_u32 s24, s24, {G1_W0 + WS0 * WTILE}')
    w_lane(a, F * 2 * XR_RHO)
    a(f'v_lshlrev_b32 v{A_L16}, 4, v1')
    a(f'v_lshlrev_b32 v{A_L4}, 2, v1')


def w_issue(a, srd, sb, sm, pitch, gemm2, wrap=False, fill=None):
    a(f's_mov_b32 m0, s{sm}')
    for j in range(4):
        hi = (j & 1) if gemm2 else (j >> 1)
        so = f's{sb}' if j == 0 else f's{24 + j}'
        if j:
            a(f's_add_u32 s{24 + j}, s{sb}, {j * ((4 if gemm2 else XR_J) * pitch - 1024)}')
        a(f'buffer_load_dwordx4 v{(VLO, VHI)[hi]}, {sq(srd)}, {so} offen offset:{1024 * j}' + pol('p_w2' if gemm2 else 'p_w1') + ' lds')
        for t in (fill[j] if fill else []):
            a(t)
    if OPT.get('xv') != 1:
        a(f's_add_u32 s{sb}, s{sb}, {64 * pitch}')
    if OPT.get('xv', 0) > 1 and wrap:
        a('s_add_u32 s6, s6, 1')
        a(f's_cmp_eq_u32 s6, {OPT["xv"]}')
        a(f's_cselect_b32 s25, {OPT["xv"] * 64 * pitch}, 0')
        a('s_cselect_b32 s6, 0, s6')
        a(f's_sub_u32 s{sb}, s{sb}, s25')
    if not gemm2 and OPT.get('rot1', 1):
        a(f's_cmp_ge_u32 s{sb}, {SZ_W}')
        a(f's_cselect_b32 s25, {SZ_W}, 0')
        a(f's_sub_u32 s{sb}, s{sb}, s25')
    if gemm2 and OPT.get('rot2', 1):
        a(f's_cmp_ge_u32 s{sb}, s6')
        a(f's_cselect_b32 s25, {1152 * pitch}, 0')
        a(f's_sub_u32 s{sb}, s{sb}, s25')


def bias_early(a):
    if OPT.get('bacc'):
        a('s_and_b32 s25, s3, 1')
        a('s_lshl1_add_u32 s25, s62, s25')
        a('s_lshl_b32 s25, s25, 7')
        a(f'v_lshrrev_b32 v{BEARLY + 8}, 4, v1')
        a(f'v_lshlrev_b32 v{BEARLY + 8}, 3, v{BEARLY + 8}')
        for m in range(4):
            a(f'buffer_load_dwordx2 v[{BEARLY + 2 * m}:{BEARLY + 2 * m + 1}], v{BEARLY + 8}, {sq(SB1)}, s25 offen offset:{32 * m}')


def g1_preload(a, n, lab):
    if n <= 0:
        return
    a('s_cmp_lt_u32 s2, 216')
    a(f's_cbranch_scc0 {lab}')
    for _ in range(n):
        w_issue(a, SW1, 60, 24, F * 2, False)
        a(f's_add_u32 s24, s24, {WTILE}')
    a.label(lab)


def flag_poll(a, name, va, soff, scnt, sleep, off=0):
    a(f's_mov_b32 s{scnt}, 0')
    a.label(name)
    a(f'buffer_load_dword v3, v{va}, {sq(SWS)}, {soff} offen offset:{off} sc1')
    a(f's_add_u32 s{scnt}, s{scnt}, 1')
    a('s_waitcnt vmcnt(0)')
    a('v_cmp_eq_u32 vcc, 0, v3')
    a('s_and_b64 exec, vcc, vcc')
    a(f's_cbranch_scc0 {name}_ok')
    if sleep:
        a(f's_sleep {sleep}')
    a(f's_cmp_lt_u32 s{scnt}, {POLL_MAX}')
    a(f's_cbranch_scc1 {name}')
    a.label(name + '_ok')
    a('s_mov_b64 exec, -1')


def stage_check(a, sleep):
    name = a.newlabel('chk')
    a('s_and_b32 s25, s54, 3')
    a('s_cmp_eq_u32 s25, 3')
    a(f's_cbranch_scc1 {name}_ok')
    a('s_mov_b32 s51, 0')
    a.label(name)
    a(f'buffer_load_dword v3, v2, {sq(SWS)}, s50 offen sc1')
    a('s_add_u32 s51, s51, 1')
    a('s_mov_b64 exec, -1')
    a('s_waitcnt vmcnt(0)')
    a('v_cmp_ne_u32 vcc, 0, v3')
    a('s_lshr_b64 s[54:55], vcc, s56')
    a('s_and_b32 s25, s54, 3')
    a('s_cmp_eq_u32 s25, 3')
    a(f's_cbranch_scc1 {name}_ok')
    if sleep:
        a(f's_sleep {sleep}')
    a('s_lshl_b64 exec, 0xff, s56')
    a(f's_cmp_lt_u32 s51, {POLL_MAX}')
    a(f's_cbranch_scc1 {name}')
    a('s_mov_b64 exec, -1')
    a.label(name + '_ok')
    a('s_lshr_b64 s[54:55], s[54:55], 2')
    a('s_add_u32 s56, s56, 2')


def refresh_issue(a):
    a(f'buffer_load_dword v{VFR}, v2, {sq(SWS)}, s50 offen sc1')


def refresh_merge(a):
    a(f'v_or_b32 v3, v3, v{VFR}')
    a('v_cmp_ne_u32 vcc, 0, v3')
    a('s_lshr_b64 s[54:55], vcc, s56')


def ring_loop(a, name, nst, nstages, nw_, na_, issue, k=None, extra=0):
    nld = nw_ + na_
    for t in range(nst - 2):
        a(f's_waitcnt vmcnt({(nst - 2 - t) * na_ + t * nld + extra})')
        a('s_barrier')
        issue()
    a(f's_movk_i32 s59, {nstages - (nst - 1) - (nst - 2)}')
    a.label(name + '_ld_loop')
    a(f's_waitcnt vmcnt({(nst - 2) * nld})')
    a('s_barrier')
    if k is not None and k.stamp_id is not None and 'q1' in k.sel:
        for i, v in enumerate((24, 20, 16, 12, 8, 4)):
            lab = a.newlabel('q')
            a(f's_cmp_eq_u32 s59, {v}')
            a(f's_cbranch_scc0 {lab}')
            k.mark(f'q{i + 1}')
            if i in (2, 3):
                k.mark(f'c{i - 2}', True)
            a.label(lab)
    issue()
    a('s_sub_u32 s59, s59, 1')
    a('s_cmp_lg_u32 s59, 0')
    a(f's_cbranch_scc1 {name}_ld_loop')
    for t in range(nst - 1):
        a(f's_waitcnt vmcnt({(nst - 2 - t) * nld})')
        a('s_barrier')


def consumer_loop(k, a, name, nstages, init, adv, nw, nact, WA, AA, FA, FB, ACC, w_h_off, act_off, gemm2, sw, sa, hook=None, loop_hook=None, tail_hook={}, zero=None, last_fill=None):
    CW = WA + 8
    CA = WA + 8 + nw

    def set_addr():
        return [f'v_add_u32 v{CW + m}, s{sw}, v{WA + m}' for m in range(nw)] + \
               [f'v_add_u32 v{CA + i}, s{sa}, v{r}' for i, r in enumerate(AA)]

    def reads(Fr, ks):
        wr, ar_ = [], []
        for m in range(nw):
            wr.append([f'ds_read_b64_tr_b16 v[{Fr + 4 * m + 2 * h}:{Fr + 4 * m + 2 * h + 1}], v{CW + m} '
                       f'offset:{ks * 8192 + h * w_h_off}' for h in range(2)])
        for t in range(nact):
            ai, off = act_off(ks, t)
            r = Fr + 4 * nw + 4 * t
            ar_.append(f'ds_read_b128 v[{r}:{r + 3}], v{CA + ai} offset:{off}')
        if OPT.get('xw') == 1 + gemm2:
            wr = []
        if OPT.get('xa') == 1 + gemm2:
            return [x for w in wr for x in w]
        return [ar_[0]] + [x for w in wr for x in w] + ar_[1:]

    def mfmas(Fr):
        out = []
        order = [(t, m) for t in range(nact) for m in range(nw)]
        mo = OPT.get('mord2' if gemm2 else 'mord1', 0)
        if mo == 1:
            order = [(t, m) for m in range(nw) for t in range(nact)]
        if mo == 2:
            order = [(t, m if t % 2 == 0 else nw - 1 - m) for t in range(nact) for m in range(nw)]
        if mo == 3:
            order = [(t if m % 2 == 0 else nact - 1 - t, m) for m in range(nw) for t in range(nact)]
        for t, m in order:
            if 1:
                acc = ACC + 4 * (m * nact + t)
                wf = f'v[{Fr + 4 * m}:{Fr + 4 * m + 3}]'
                af = f'v[{Fr + 4 * nw + 4 * t}:{Fr + 4 * nw + 4 * t + 3}]'
                s0, s1 = (af, wf) if gemm2 else (wf, af)
                out.append(f'v_mfma_f32_16x16x32_bf16 v[{acc}:{acc + 3}], {s0}, {s1}, v[{acc}:{acc + 3}]')
        if OPT.get('x32') == 1 + gemm2:
            out = []
            for j in range(nw * nact // 2):
                acc = ACC + 16 * (j % (nw * nact // 4))
                wf = Fr + 4 * (j % nw)
                af = Fr + 4 * nw + 4 * (j % nact)
                out.append(f'v_mfma_f32_32x32x16_bf16 v[{acc}:{acc + 15}], v[{wf}:{wf + 3}], v[{af}:{af + 3}], v[{acc}:{acc + 15}]')
            return out
        if OPT.get('xm') == 1 + gemm2:
            out = [f'v_mov_b32 v{ACC}, v{ACC}' for _ in out]
        return out

    nm = nw * nact
    bar_gap = OPT.get('bargap2' if gemm2 else 'bargap1', OPT.get('bargap', nm - 3))
    pga = OPT.get('pga2' if gemm2 else 'pga1')
    pgb = OPT.get('pgb2' if gemm2 else 'pgb1')
    if OPT.get('x32') == 1 + gemm2:
        bar_gap = nm // 2 - 2
    for t in zero or [f'v_mov_b32 v{ACC + r}, 0' for r in range(4 * nw * nact)]:
        a(t)
    for t in init + set_addr():
        a(t)
    a(f's_movk_i32 s59, {nstages - 1}')
    a('s_barrier')
    k.mark(name + 'go')
    if name == ('g2' if OPT.get('cg2') else 'g1'):
        k.mark('c0', True)
    for t in reads(FA, 0):
        a(t)
    if hook:
        hook()
    if OPT.get('advb', 0):
        for t in adv:
            a(t)
    if OPT.get('lal'):
        a(f'.p2align {OPT["lal"]}')
    a.label(name + '_mm_loop')
    if loop_hook:
        loop_hook()
    a('s_waitcnt lgkmcnt(0)')
    advb = OPT.get('advb', 0)
    fl = [(0, t) for t in reads(FB, 1)] + [(0, t) for t in ([] if advb else adv) + set_addr()]
    fl += [(bar_gap, 's_waitcnt lgkmcnt(0)'), (bar_gap, 's_barrier')]
    interleave(a, mfmas(FA), fl, pga)
    fl = [(0, t) for t in reads(FA, 0)] + [(0, t) for t in (adv if advb else [])] + [(0, 's_sub_u32 s59, s59, 1'), (0, 's_cmp_lg_u32 s59, 0')]
    interleave(a, mfmas(FB), fl, pgb)
    a(f's_cbranch_scc1 {name}_mm_loop')
    if 2 in tail_hook:
        tail_hook[2]()
    a('s_waitcnt lgkmcnt(0)')
    interleave(a, mfmas(FA), [(0, t) for t in reads(FB, 1)])
    if 1 in tail_hook:
        tail_hook[1]()
    a('s_waitcnt lgkmcnt(0)')
    if not gemm2:
        a('s_barrier')
    interleave(a, mfmas(FB), last_fill or [], OPT.get('eovp', 2) if last_fill else None)
    k.mark(name + 'end')
    if name == ('g2' if OPT.get('cg2') else 'g1'):
        k.mark('c1', True)


def g2_ids(a):
    a('s_lshr_b32 s44, s36, 1')
    a('s_and_b32 s45, s36, 1')
    a('s_lshl_b32 s45, s45, 3')
    a('s_lshr_b32 s46, s37, 2')
    a('s_add_u32 s45, s45, s46')
    a('s_and_b32 s46, s37, 3')


RHB = 20
LW0, LW1 = 18, 19


def g1_held():
    rm = OPT.get('rm', 0)
    return [u for u in range(4, G1_STAGES) if rm >> u & 1]


def g1_batch(a, first=0, last=99):
    pitch = F * 2
    n = 0
    for i, u in enumerate(g1_held()):
        if not first <= i < last:
            continue
        for j in range(4):
            off = (u - 4) * 64 * pitch + j * 4 * pitch
            so = 's60'
            if off:
                so = f's{44 + n % 3}'
                a(f's_add_u32 {so}, s60, {off}')
            r = RHB + 16 * i + 4 * j
            a(f'buffer_load_dwordx4 v[{r}:{r + 3}], v{(VLO, VHI)[j >> 1]}, {sq(SW1)}, {so} offen' + pol('p_w1'))
            n += 1


def g1_first(a):
    a('s_mul_i32 s4, s39, 3072')
    for u in range(4):
        a(f's_add_u32 m0, s4, {(u + 1) * G1_ACT}')
        so = 's61'
        if u:
            so = 's25'
            a(f's_add_u32 s25, s61, {u * G1_GACT}')
        for j in range(3):
            a(f'buffer_load_dwordx4 v{act_src(j)}, {sq(SWS)}, {so} offen offset:{1024 * j}' + pol('p_sp1') + ' lds')


def g1_flag_addr(a):
    a('v_lshrrev_b32 v2, 1, v1')
    a('v_lshlrev_b32 v2, 13, v2')
    a('v_and_b32 v3, 1, v1')
    a('v_lshl_add_u32 v2, v3, 10, v2')
    a('s_lshl_b32 s46, s39, 11')
    a(f's_add_u32 s46, s46, {WS_FLG + FL_H2}')


def g1_gate(a):
    g1_flag_addr(a)
    m = (1 << 2 * OPT['hint1']) - 1
    a(f's_mov_b64 exec, {m:#x}')
    a(f'buffer_load_dword v3, v2, {sq(SWS)}, s46 offen offset:4 sc1')
    a('s_waitcnt vmcnt(0)')
    a('v_cmp_eq_u32 vcc, 0, v3')
    a('s_mov_b64 exec, -1')
    a('s_mov_b32 s47, vcc_lo')
    a('s_cbranch_vccnz f_h2done')
    g1_first(a)


def validate(a, va, offs, reload, scnt, sleep, vt=24):
    name = a.newlabel('val')
    a(f's_mov_b32 s{scnt}, 0')
    a.label(name)
    for i, (ad, off) in enumerate(zip(va, offs)):
        a(f'ds_read_b128 v[{vt + 4 * i}:{vt + 4 * i + 3}], v{ad} offset:{off}')
    rs = list(range(vt, vt + 4 * len(offs)))
    n = len(offs)
    cur = None
    for i in range(n):
        a(f's_waitcnt lgkmcnt({n - 1 - i})')
        r = vt + 4 * i
        if cur is None:
            a(f'v_max3_u32 v{r}, v{r}, v{r + 1}, v{r + 2}')
            a(f'v_max_u32 v{r}, v{r}, v{r + 3}')
        else:
            a(f'v_max3_u32 v{r}, v{r}, v{r + 1}, v{r + 2}')
            a(f'v_max3_u32 v{r}, v{r}, v{r + 3}, v{cur}')
        cur = r
    a(f'v_cmp_eq_u32 vcc, -1, v{cur}')
    a('s_and_b64 exec, vcc, vcc')
    a(f's_cbranch_scc0 {name}_ok')
    a(f's_cmp_lt_u32 s{scnt}, {POLL_MAX}')
    a(f's_cbranch_scc0 {name}_ok')
    if sleep:
        a(f's_cmp_eq_u32 s{scnt}, 0')
        a(f's_cbranch_scc1 {name}_ns')
        a(f's_sleep {sleep}')
        a.label(name + '_ns')
    a(f's_add_u32 s{scnt}, s{scnt}, 1')
    reload()
    a('s_mov_b64 exec, -1')
    a('s_waitcnt vmcnt(0)')
    a(f's_branch {name}')
    a.label(name + '_ok')
    a('s_mov_b64 exec, -1')


def g1_loader_r(k):
    a = k.a
    pitch = F * 2
    NS = OPT.get('sp1', 0)
    if OPT.get('hint1'):
        a('s_cmp_eq_u32 s47, 0')
        a('s_cbranch_scc1 g1_first_done')
        a('s_mov_b32 exec_lo, s47')
        a('s_mov_b32 exec_hi, 0')
        flag_poll(a, 'g1_hint', 2, 's46', 51, OPT.get('hsl3', 1), 4)
        g1_first(a)
        a.label('g1_first_done')
    elif NS and not OPT.get('spsite'):
        g1_first(a)
    held = g1_held()
    assert RHB + 16 * len(held) <= 256
    if OPT.get('rsite', 0) == 0:
        g1_batch(a)
    elif OPT.get('rsite', 0) == 2:
        g1_batch(a, OPT.get('rsp', 4))
    a('v_lshrrev_b32 v2, 1, v1')
    a('v_lshlrev_b32 v2, 13, v2')
    a('v_and_b32 v3, 1, v1')
    a('v_lshl_add_u32 v2, v3, 10, v2')
    a('s_lshl_b32 s50, s39, 11')
    a(f's_add_u32 s50, s50, {WS_FLG + FL_H2}')
    a('s_mul_i32 s4, s39, 3072')
    a(f's_sub_u32 s24, s24, {(NPRE + WS0) * WTILE}')
    a(f'v_add_u32 v{LW0}, s24, v{A_L16}')
    a(f'v_add_u32 v{LW1}, {4 * WTILE}, v{LW0}')
    if OPT.get('hsl'):
        a(f's_sleep {OPT["hsl"]}')
    a('s_mov_b64 s[54:55], 0')
    a(f's_mov_b32 s56, {2 * NS}')
    q = []
    slot = lambda u: (u + 1) % 5
    VAL = 16
    if NS:
        a(f'v_add_u32 v{VAL}, s4, v{A_L16}')
        q = [u for u in range(4) for j in range(3)]

    def act(u, sfx=None):
        if u == NS and NS:
            i = q.index('fl')
            a(f's_waitcnt vmcnt({len(q) - 1 - i})')
            a('v_cmp_ne_u32 vcc, 0, v3')
            a('s_lshr_b64 s[54:55], vcc, s56')
            a(f's_andn2_b64 exec, {(1 << 2 * NS) - 1:#x}, vcc')
            a('s_cbranch_scc0 g1_skipped_ok')
            flag_poll(a, 'g1_skipped', 2, 's50', 51, 2)
        if u >= NS and sfx is None:
            stage_check(a, OPT.get('hsl2', 1))
        a(f's_add_u32 m0, s4, {slot(u) * G1_ACT}')
        so = 's61'
        if u and OPT.get('xh') != 1:
            so = 's25'
            a(f's_add_u32 s25, s61, {u * G1_GACT}')
        for j in range(3):
            a(f'buffer_load_dwordx4 v{act_src(j)}, {sq(SWS)}, {so} offen offset:{1024 * j}' + (sfx or pol('p_h2' if u >= NS else 'p_sp1')) + ' lds')
            if sfx is None:
                q.append(u)

    def first_poll():
        a(f'buffer_load_dword v3, v2, {sq(SWS)}, s50 offen sc1')
        q.append('fl')

    def w(u):
        if u in held:
            if OPT.get('xd') == 3:
                return
            r = RHB + 16 * held.index(u)
            for j in range(4):
                ad, off = (LW1, 0) if slot(u) == 4 else (LW0, slot(u) * WTILE)
                a(f'ds_write_b128 v{ad}, v[{r + 4 * j}:{r + 4 * j + 3}] offset:{off + 1024 * j}')
            return
        a(f's_add_u32 m0, s24, {(u + WS0) % NW1 * WTILE}')
        for j in range(4):
            off = (u - NPRE) * 64 * pitch * (OPT.get('xv') != 1) + j * (XR_J * pitch - 1024)
            so = 's60'
            if off:
                so = f's{44 + j % 3}'
                a(f's_add_u32 {so}, s60, {off}')
            a(f'buffer_load_dwordx4 v{(VLO, VHI)[j >> 1]}, {sq(SW1)}, {so} offen offset:{1024 * j}' + pol('p_w1') + ' lds')
            q.append(u)
    for u in range(4):
        if not NS:
            act(u)
        if u == 0:
            k.mark('g1go')
            k.markv('xdr', 51)
    fp = OPT.get('spfp', NS - 5)
    if NS and fp < 0:
        first_poll()
    pend = []
    for t in range(G1_STAGES):
        last = max(i for i, u in enumerate(q) if u not in ('fl', 'fr') and u <= t)
        a(f's_waitcnt vmcnt({len(q) - 1 - last}) lgkmcnt(0)')
        if t < NS:
            validate(a, [VAL] * 3, [slot(t) * G1_ACT + 1024 * j for j in range(3)], lambda: act(t, ' sc1'), 51, OPT.get('spsl', 2))
            if t == 0:
                k.markv('xn', 51)
        if pend and pend[0] < last:
            pend.pop(0)
            refresh_merge(a)
        a('s_barrier')
        if NS and t == fp:
            first_poll()
        if OPT.get('rf1', 0) >> t & 1:
            refresh_issue(a)
            q.append('fr')
            pend.append(len(q) - 1)
        if k.stamp_id is not None and 'q1' in k.sel and t % 4 == 0 and 4 <= t <= 24:
            k.mark(f'q{t // 4}')
            if t in (12, 16):
                k.mark(f'c{t // 4 - 3}', True)
        u = t + 4
        if OPT.get('xd') == 1 or (OPT.get('xd') == 2 and u < G1_STAGES):
            if OPT['xd'] == 2:
                act(u)
            continue
        uw = t + NW1 - 1
        dow = NPRE <= uw < G1_STAGES
        if u in held or OPT.get('actfirst'):
            if u < G1_STAGES:
                act(u)
            if dow:
                w(uw)
        else:
            if dow:
                w(uw)
            if u < G1_STAGES:
                act(u)
    k.mark('g1end')


def g1_loader(k):
    a = k.a
    if OPT.get('rm'):
        return g1_loader_r(k)
    a('v_lshrrev_b32 v2, 1, v1')
    a('v_lshlrev_b32 v2, 13, v2')
    a('v_and_b32 v3, 1, v1')
    a('v_lshl_add_u32 v2, v3, 10, v2')
    a('s_lshl_b32 s50, s39, 11')
    a(f's_add_u32 s50, s50, {WS_FLG + FL_H2}')
    a(f's_mul_i32 s5, s63, {32 * G1_ACT}')
    a(f's_add_u32 s5, s5, {WS_H2 + 32 * G1_ACT}')
    a('s_mul_i32 s4, s39, 3072')
    a(f's_add_u32 s4, s4, {G1_ACT}')
    if OPT.get('xh', 0) > 1:
        a('s_mov_b32 s5, 0')
    if OPT.get('xv', 0) > 1:
        a('s_mov_b32 s6, 0')
        a(f's_sub_u32 s60, s60, {4 * 64 * F * 2}')
    if OPT.get('hsl'):
        a(f's_sleep {OPT["hsl"]}')
    prog = OPT.get('prog1', 1)
    if prog:
        a('s_mov_b64 s[54:55], 0')
        a('s_mov_b32 s56, 0')
    else:
        flag_poll(a, 'g1_fp', 2, 's50', 51, OPT.get('hsl2', 1))
        k.mark('g1go')
        k.markv('xdr', 51)

    def act():
        if prog:
            stage_check(a, OPT.get('hsl2', 1))
        a('s_mov_b32 m0, s4')
        for j in range(3):
            a(f'buffer_load_dwordx4 v{A_L16}, {sq(SWS)}, s61 offen offset:{1024 * j}' + pol('p_h2') + ' lds')
        if OPT.get('xh') != 1:
            a(f's_add_u32 s61, s61, {G1_ACT}')
        if OPT.get('xh', 0) > 1:
            a('s_add_u32 s5, s5, 1')
            a(f's_cmp_eq_u32 s5, {OPT["xh"]}')
            a(f's_cselect_b32 s25, {OPT["xh"] * G1_ACT}, 0')
            a('s_cselect_b32 s5, 0, s5')
            a('s_sub_u32 s61, s61, s25')
        a(f's_add_u32 s4, s4, {G1_ACT}')
        if OPT.get('rot1', 1):
            a('s_cmp_ge_u32 s61, s5')
            a(f's_cselect_b32 s25, {32 * G1_ACT}, 0')
            a('s_sub_u32 s61, s61, s25')
    for st in range(4):
        act()
        if prog and st == 0:
            k.mark('g1go')
            k.markv('xdr', 51)
    nt5 = OPT.get('t5n', 1) if OPT.get('t5f') else 0
    if nt5:
        a('s_lshl_b32 s58, s37, 2')
        a('s_add_u32 s58, s58, s39')
        a(f's_add_u32 s58, s58, {OPT["t5f"]}')
        a(f's_mul_i32 s58, s58, {6 * F * 2}')
        a('s_add_u32 s58, s58, s57')
        for r in range(nt5):
            a(f'buffer_load_dword v8, v17, {sq(SW1)}, s58 offen')
            a(f's_add_u32 s58, s58, {108 * 6 * F * 2}')
    a(f's_sub_u32 s24, s24, {5 * WTILE}')
    a(f's_sub_u32 s4, s4, {5 * G1_ACT}')

    sw2 = OPT.get('sw2', 0)
    fill = None
    if sw2:
        a('s_lshr_b32 s44, s36, 1')
        a('s_and_b32 s45, s36, 1')
        a('s_lshl_b32 s45, s45, 11')
        a(f's_mul_i32 s46, s44, {1152 * 4096}')
        a('s_add_u32 s45, s45, s46')
        a('s_lshl_b32 s46, s37, 2')
        a('s_add_u32 s46, s46, s39')
        a(f's_add_u32 s46, s46, {1152 - 108}')
        a('s_lshl_b32 s46, s46, 12')
        a('s_add_u32 s46, s46, s45')
        ld = [f's_buffer_load_dwordx2 s[100:101], {sq(SW2)}, s46 offset:{128 * i + 60}' for i in range(sw2)]
        adv = [[f's_add_u32 s46, s46, {128 * sw2}'],
               [f's_and_b32 s48, s46, {2048 - 128 * sw2}', f's_cselect_b32 s48, 0, {108 * 4096 + 2048}', 's_sub_u32 s46, s46, s48']]
        h = (sw2 + 1) // 2
        fill = [ld[:h], ld[h:] + adv[0], adv[1], []]

    def issue():
        w_issue(a, SW1, 60, 24, F * 2, False, True, fill)
        act()
        for _ in range(OPT.get('lgap', 0)):
            a('s_add_u32 s48, s48, 1')
        a(f's_add_u32 s24, s24, {WTILE}')
        a(f's_cmp_ge_u32 s24, {G1_WEND}')
        a(f's_cselect_b32 s25, {5 * WTILE}, 0')
        a(f's_cselect_b32 s26, {5 * G1_ACT}, 0')
        a('s_sub_u32 s24, s24, s25')
        a('s_sub_u32 s4, s4, s26')
    ring_loop(a, 'g1', 5, G1_STAGES, 4, 3, issue, k, nt5)
    k.mark('g1end')


def g1_consumer(k):
    a = k.a
    WA, AAR, BIAS, FA, FB, ACC = 8, 12, 24, 32, 60, 88
    a('s_and_b32 s46, s3, 1')
    a('s_lshr_b32 s47, s3, 1')
    a('s_lshl_b32 s48, s46, 7')
    a('s_lshl_b32 s49, s62, 8')
    a('s_add_u32 s48, s48, s49')
    a('v_lshlrev_b32 v7, 3, v6')
    BA = OPT.get('bacc', 0)
    for m in range(0 if BA else 4):
        a(f'buffer_load_dwordx2 v[{BIAS + 2 * m}:{BIAS + 2 * m + 1}], v7, {sq(SB1)}, s48 offen offset:{32 * m}')
    for m in range(4):
        a(f's_lshl_b32 s{40 + m}, s46, 2')
        a(f's_add_u32 s{40 + m}, s{40 + m}, {m}')
    w_addr_setup(a, WA, 4, 40, 8)
    a('v_mul_u32_u24 v2, 1536, v6')
    a('v_lshl_add_u32 v2, v5, 4, v2')
    a('s_mul_i32 s48, s47, 768')
    a(f'v_add_u32 v{AAR}, s48, v2')
    a('s_mul_i32 s48, s63, 6')
    a('s_mul_i32 s49, s47, 3')
    a('s_add_u32 s48, s48, s49')
    a('s_lshl_b32 s49, s62, 2')
    a('s_lshl_b32 s50, s46, 1')
    a('s_add_u32 s49, s49, s50')
    a('s_mul_i32 s49, s49, 9')
    for t in range(3):
        a(f's_add_u32 s50, s48, {t}')
        a('s_mul_i32 s51, s50, 57')
        a('s_lshr_b32 s51, s51, 9')
        a(f's_mul_i32 s51, s51, {144 * 9 - 9}')
        a('s_add_u32 s50, s50, s51')
        a('s_add_u32 s50, s50, s49')
        a('s_lshl_b32 s50, s50, 10')
        a(f's_add_u32 s{52 + t}, s50, {WS_U}')
        a(f's_add_u32 s{55 + t}, s50, {WS_U + 9216}')
    a('s_mul_i32 s58, s62, 6')
    a('s_add_u32 s58, s58, s63')
    a('s_lshl_b32 s58, s58, 3')
    a('s_add_u32 s58, s58, s3')
    a('s_lshl_b32 s58, s58, 7')
    a(f's_add_u32 s58, s58, {WS_FLG + FL_U}')
    init = [f's_mov_b32 s24, {G1_W0 + WS0 * WTILE}', f's_mov_b32 s4, {G1_ACT}']
    adv = [f's_add_u32 s24, s24, {WTILE}', f's_add_u32 s4, s4, {G1_ACT}', f's_cmp_eq_u32 s24, {G1_WEND}',
           f's_cselect_b32 s24, {G1_W0}, s24', 's_cselect_b32 s4, 0, s4']
    if NW1 != 5:
        adv = adv[:4] + [f's_cmp_eq_u32 s4, {5 * G1_ACT}', 's_cselect_b32 s4, 0, s4']
    C0 = -2.0 * math.sqrt(2.0 / math.pi) * LOG2E
    C1 = C0 * 0.044715
    T = FB
    KC0, KC1, K1 = (140, 142, 144) if BA else (T + 20, T + 22, T + 24)

    def consts():
        for r, v in ((KC0, C0), (KC1, C1), (K1, 1.0)):
            a(f'v_mov_b32 v{r}, {f32(v)}')
            a(f'v_mov_b32 v{r + 1}, {f32(v)}')
    B = FA
    EO = OPT.get('eov', 0)
    assert BA or not EO
    OB = FB + 12
    if EO:
        T, OB = 170, 180
    epi = []
    pr = lambda r: f'v[{r}:{r + 1}]'
    for t in range(3):
        for p in range(2):
            o = OB + 4 * ((t * 2 + p) % 2)
            prs = [(ACC + 4 * ((2 * p + mm) * 3 + t) + 2 * h, B + 4 * (2 * p + mm) + 2 * h, T + 4 * mm + 2 * h)
                   for mm in range(2) for h in range(2)]
            for x, b, y in prs:
                if not BA:
                    epi.append(f'v_pk_add_f32 {pr(x)}, {pr(x)}, {pr(b)}')
            for x, b, y in prs:
                epi.append(f'v_pk_mul_f32 {pr(y)}, {pr(x)}, {pr(x)}')
            for x, b, y in prs:
                epi.append(f'v_pk_fma_f32 {pr(y)}, {pr(y)}, {pr(KC1)}, {pr(KC0)}')
            for x, b, y in prs:
                epi.append(f'v_pk_mul_f32 {pr(y)}, {pr(y)}, {pr(x)}')
            for i in range(8):
                epi.append(f'v_exp_f32 v{T + i}, v{T + i}')
            for x, b, y in prs:
                epi.append(f'v_pk_add_f32 {pr(y)}, {pr(y)}, {pr(K1)}')
            for i in range(8):
                epi.append(f'v_rcp_f32 v{T + i}, v{T + i}')
            for x, b, y in prs:
                epi.append(f'v_pk_mul_f32 {pr(x)}, {pr(x)}, {pr(y)}')
            for i, (x, b, y) in enumerate(prs):
                epi.append(f'v_cvt_pk_bf16_f32 v{o + i}, v{x}, v{x + 1}')
            epi.append(f'buffer_store_dwordx4 v[{o}:{o + 3}], v{A_L16}, {sq(SWS)}, s{(52 if p == 0 else 55) + t} offen sc1')
    n_early = 41 if EO else 0
    zero = None
    if BA:
        consts()
        a('s_mov_b32 s42, 0xffff0000')
        zero = []
        for m in range(4):
            for t in range(3):
                for h in range(2):
                    zero.append(f'v_lshlrev_b32 v{ACC + 4 * (m * 3 + t) + 2 * h}, 16, v{BEARLY + 2 * m + h}')
                    zero.append(f'v_and_b32 v{ACC + 4 * (m * 3 + t) + 2 * h + 1}, s42, v{BEARLY + 2 * m + h}')
    consumer_loop(k, a, 'g1', G1_STAGES, init, adv, 4, 3, WA, [AAR], FA, FB, ACC, 1024,
                  lambda ks, t: (0, ks * 6144 + t * 256), False, 24, 4, zero=zero, last_fill=[(EO, t) for t in epi[:n_early]])
    B = FA
    if not BA:
        a('s_mov_b32 s42, 0xffff0000')
        a('s_waitcnt vmcnt(0)')
        for m in range(4):
            for h in range(2):
                a(f'v_lshlrev_b32 v{B + 4 * m + 2 * h}, 16, v{BIAS + 2 * m + h}')
                a(f'v_and_b32 v{B + 4 * m + 2 * h + 1}, s42, v{BIAS + 2 * m + h}')
        consts()
    for t in epi[n_early:]:
        a(t)
    if OPT.get('hint2'):
        a('v_mov_b32 v3, 1')
        a('s_mov_b64 exec, 1')
        a(f'buffer_store_dword v3, off, {sq(SWS)}, s58 offset:4 sc1')
        a('s_mov_b64 exec, -1')
    if not OPT.get('udef'):
        a('v_mov_b32 v3, 1')
        a('s_waitcnt vmcnt(0)')
        a('s_mov_b64 exec, 1')
        a(f'buffer_store_dword v3, off, {sq(SWS)}, s58 sc1')
        a('s_mov_b64 exec, -1')
    k.mark('g1out')
    if OPT.get('ubar', 1):
        a('s_barrier')


def g2_order(q):
    fts = list(range(9))
    if OPT.get('ord2', 1):
        fts = [f for f in fts if (9 * q + f) % 4 != 1] + [f for f in fts if (9 * q + f) % 4 == 1]
    return sum(f << (4 * i) for i, f in enumerate(fts))


def late_poison(a):
    NS2 = OPT.get('sp2', 0)
    if not NS2:
        return
    nt = (NS2 + 1) // 2
    c = 2 if nt <= 3 else 3
    wpt = 36 // c
    assert 16 * nt * wpt <= 223 * 4
    for i in range(4):
        a(f'v_mov_b32 v{28 + i}, -1')
    a('s_sub_u32 s50, s2, 33')
    a('s_lshl_b32 s50, s50, 2')
    a('s_add_u32 s50, s50, s39')
    a(f's_cmp_lt_u32 s50, {16 * nt * wpt}')
    a('s_cbranch_scc0 f_noup')
    sdiv(a, 44, 45, 50, nt * wpt)
    sdiv(a, 46, 47, 45, wpt)
    tab = 0
    for q in range(4):
        for j in range(nt):
            tab |= (g2_order(q) >> (4 * j) & 15) << (4 * (4 * q + j))
    a(f's_mov_b32 s50, {tab & 0xffffffff:#x}')
    a(f's_mov_b32 s51, {tab >> 32:#x}')
    a('s_and_b32 s45, s44, 12')
    a('s_add_u32 s45, s45, s46')
    a('s_lshl_b32 s45, s45, 2')
    a('s_lshr_b64 s[50:51], s[50:51], s45')
    a('s_and_b32 s50, s50, 15')
    a('s_lshr_b32 s45, s44, 2')
    a('s_mul_i32 s45, s45, 9')
    a('s_add_u32 s50, s50, s45')
    a('s_and_b32 s44, s44, 3')
    a('s_mul_i32 s44, s44, 36')
    a('s_add_u32 s50, s50, s44')
    a('s_mul_i32 s50, s50, 36864')
    a(f's_mul_i32 s47, s47, {1024 * c}')
    a('s_add_u32 s50, s50, s47')
    a(f's_add_u32 s50, s50, {WS_U}')
    for i in range(c):
        a(f'buffer_store_dwordx4 v[28:31], v{A_L16}, {sq(SWS)}, s50 offen offset:{1024 * i} sc1')
    a.label('f_noup')


def order_table(a):
    for q in range(4):
        t = g2_order(q)
        if q:
            a(f's_cmp_eq_u32 s44, {q}')
            a(f's_cselect_b32 s6, {t & 0xffffffff:#x}, s6')
            a(f's_cselect_b32 s7, {t >> 32}, s7')
        else:
            a(f's_mov_b32 s6, {t & 0xffffffff:#x}')
            a(f's_mov_b32 s7, {t >> 32}')


def pf_w2b(a, sj, nw, first, last, depth):
    a('s_lshr_b32 s44, s36, 1')
    order_table(a)
    a('s_and_b32 s51, s36, 1')
    a('s_lshl_b32 s51, s51, 11')
    a(f's_mul_i32 s52, s44, {1152 * 4096}')
    a('s_add_u32 s51, s51, s52')
    a(f's_add_u32 s52, {first}, s{sj}')
    a('v_lshrrev_b32 v2, 4, v1')
    a('v_lshlrev_b32 v2, 12, v2')
    a('v_and_b32 v3, 15, v1')
    a('v_lshl_add_u32 v2, v3, 7, v2')
    n = last - first
    reps = (n + nw - 1) // nw
    dl = OPT.get('pf2dl', 99)
    for r in range(reps):
        if (r + 1) * nw > n:
            lab = a.newlabel('pfskip')
            a(f's_cmp_lt_u32 s{sj}, {n - r * nw}')
            a(f's_cbranch_scc0 {lab}')
        a('s_lshr_b32 s53, s52, 5')
        a('s_lshl_b32 s53, s53, 2')
        a('s_lshr_b64 s[54:55], s[6:7], s53')
        a('s_and_b32 s54, s54, 15')
        a('s_lshl_b32 s54, s54, 5')
        a('s_and_b32 s53, s52, 31')
        a('s_add_u32 s54, s54, s53')
        a('s_lshl_b32 s54, s54, 14')
        a('s_add_u32 s54, s54, s51')
        if r >= depth and r < dl:
            a(f's_waitcnt vmcnt({(depth - 1) * len(tpair("tpw"))})')
            if OPT.get('pf2gap'):
                a(f's_sleep {OPT["pf2gap"]}')
        for sfx in tpair('tpw'):
            a(f'buffer_load_dword v4, v2, {sq(SW2)}, s54 offen' + sfx)
        if (r + 1) * nw > n:
            a.label(lab)
        else:
            a(f's_add_u32 s52, s52, {nw}')
    a('s_waitcnt vmcnt(0)')


def g2_loader(k):
    a = k.a
    g2_ids(a)
    pitch = S * 2
    w_lane(a, pitch)
    a(f's_mul_i32 s52, s44, {1152 * 4096}')
    a('s_lshl_b32 s50, s45, 8')
    a('s_add_u32 s52, s52, s50')
    a(f's_mul_i32 s50, s39, {16 * pitch}')
    a('s_add_u32 s52, s52, s50')
    a('s_mul_i32 s53, s46, 144')
    a('s_mul_i32 s50, s44, 36')
    a('s_add_u32 s53, s53, s50')
    a('s_mul_i32 s53, s53, 9216')
    a('s_mul_i32 s4, s39, 4608')
    a('s_add_u32 s53, s53, s4')
    a(f's_add_u32 s53, s53, {WS_U}')
    a(f's_add_u32 s4, s4, {G2_A0}')
    a('s_lshl_b32 s24, s39, 12')
    order_table(a)
    a('v_min_u32 v2, 35, v1')
    a('v_and_b32 v3, 1, v2')
    a('s_mul_i32 s50, s46, 3')
    a('s_and_b32 s51, s39, 1')
    a('s_add_u32 s50, s50, s51')
    a('v_add_u32 v3, s50, v3')
    a('v_and_b32 v4, 60, v2')
    a('v_lshrrev_b64 v[12:13], v4, s[6:7]')
    a('v_and_b32 v4, 15, v12')
    a('v_mul_u32_u24 v4, 6, v4')
    a('v_lshrrev_b32 v7, 1, v3')
    a('v_add_u32 v4, v4, v7')
    a('v_and_b32 v3, 1, v3')
    a('v_lshlrev_b32 v3, 1, v3')
    a('v_bfe_u32 v2, v2, 1, 1')
    a('v_add_u32 v3, v3, v2')
    a('v_lshlrev_b32 v3, 7, v3')
    a('v_lshl_add_u32 v2, v4, 10, v3')
    a(f's_mul_i32 s50, s44, {54 * 1024}')
    a(f's_add_u32 s50, s50, {WS_FLG + FL_U}')

    def zsel(t, sel=3):
        if t % 2 == 0:
            j = t // 2
            a(f's_bfe_u32 s5, s{6 + j // 8}, {(4 << 16) | (4 * (j % 8)):#x}')
            if sel & 1:
                a(f's_mul_i32 s57, s5, {128 * pitch * (not OPT.get("yv"))}')
                a('s_add_u32 s57, s57, s52')
            if sel & 2:
                a(f's_mul_i32 s58, s5, {36864 * (not OPT.get("yh"))}')
                a('s_add_u32 s58, s58, s53')

    held = [t for t in range(NPRE2, G2_STAGES) if OPT.get('wr2', 0) >> t & 1]
    hreg = {t: 32 + 16 * i for i, t in enumerate(held)}
    assert len(held) <= 14

    def w(t, reg=None):
        if reg is None:
            a(f's_add_u32 m0, s24, {(t % NW2) * G2_WST}')
        for j in range(4):
            off = (t % 2) * 64 * pitch + j * (4 * pitch - 1024)
            so = 's57'
            if off:
                so = f's{25 + j % 3}'
                a(f's_add_u32 {so}, s57, {off}')
            if reg is None:
                a(f'buffer_load_dwordx4 v{(VLO, VHI)[j & 1]}, {sq(SW2)}, {so} offen offset:{1024 * j}' + pol('p_w2') + ' lds')
            else:
                a(f'buffer_load_dwordx4 v[{reg + 4 * j}:{reg + 4 * j + 3}], v{(VLO, VHI)[j & 1]}, {sq(SW2)}, {so} offen offset:{1024 * j}'
                  + pol('p_w2'))

    def park(ts):
        for t in ts:
            zsel(t & ~1, 1)
            w(t, hreg[t])
            q.extend([0] * 4)

    def unpark(t):
        base = (t % NW2) * G2_WST
        for j in range(4):
            r = hreg[t] + 4 * j
            a(f'ds_write_b128 v{28 + base // 49152}, v[{r}:{r + 3}] offset:{base % 49152 + 1024 * j}')

    NS = OPT.get('sp2', 0)
    q = []
    if held:
        a(f'v_add_u32 v28, s24, v{A_L16}')
        a('v_add_u32 v29, 49152, v28')
        park(held[:OPT.get('wr2a', 99)])
    a('s_cmp_lt_u32 s2, 216')
    a('s_cbranch_scc0 g2_ld_nobar')
    a('s_barrier')
    a.label('g2_ld_nobar')

    def act(t, sfx=None):
        if NS and t == NS:
            i = q.index('fl')
            a(f's_waitcnt vmcnt({len(q) - 1 - i})')
            a('v_cmp_ne_u32 vcc, 0, v3')
            a('s_lshr_b64 s[54:55], vcc, s56')
        if t >= NS and sfx is None:
            stage_check(a, OPT.get('usl2', 2))
            if t == 0:
                k.mark('g2go')
                k.markv('xn', 51)
        a(f's_add_u32 m0, s4, {(t % G2_NST) * G2_AST}')
        so = 's58'
        if sfx:
            so = 's59'
            j = t // 2
            a(f's_bfe_u32 s59, s{6 + j // 8}, {(4 << 16) | (4 * (j % 8)):#x}')
            a('s_mul_i32 s59, s59, 36864')
            a('s_add_u32 s59, s59, s53')
            if t % 2:
                a('s_add_u32 s59, s59, 18432')
            a('s_mov_b64 s[48:49], exec')
            a('s_mov_b32 exec_hi, 0')
        else:
            if t % 2:
                so = 's59'
                a('s_add_u32 s59, s58, 18432')
            a('s_mov_b64 exec, 0xffffffff')
        p = sfx or pol('p_u' if t >= NS else 'p_sp2')
        a(f'buffer_load_dwordx4 v{A_L16}, {sq(SWS)}, {so} offen' + p + ' lds')
        a('s_mov_b64 exec, ' + ('s[48:49]' if sfx else '-1'))
        for j in range(4):
            a(f'buffer_load_dwordx4 v{A_L16}, {sq(SWS)}, {so} offen offset:{512 + 1024 * j}' + p + ' lds')
        if not sfx:
            q.extend([t] * 5)

    def first_poll():
        a(f'buffer_load_dword v3, v2, {sq(SWS)}, s50 offen sc1')
        q.append('fl')

    for t in range(NPRE2):
        zsel(t, 1)
        w(t)
        q.extend([t] * 4)
    if held[OPT.get('wr2a', 99):]:
        park(held[OPT.get('wr2a', 99):])
        zsel(NPRE2 - 1 & ~1, 1)
    if OPT.get('g2t'):
        if OPT.get('g2ty'):
            a(f's_cmp_ge_u32 s37, {OPT["g2ty"]}')
            a('s_cbranch_scc0 g2_notch')
        if OPT.get('g2tsl'):
            a(f's_sleep {OPT["g2tsl"]}')
        a('v_lshrrev_b32 v4, 1, v1')
        a(f'v_mul_u32_u24 v4, {pitch}, v4')
        a('v_and_b32 v5, 1, v1')
        a('v_lshl_add_u32 v4, v5, 7, v4')
        a('s_lshl_b32 s48, s46, 2')
        a('s_add_u32 s48, s48, s39')
        a(f's_add_u32 s48, s48, {2 * NPRE2}')
        a(f's_mul_i32 s47, s39, {16 * pitch}')
        a('s_sub_u32 s47, s52, s47')
        for r in range(OPT['g2t']):
            if r:
                a('s_add_u32 s48, s48, 16')
                a('s_cmp_lt_u32 s48, 36')
                a('s_cbranch_scc0 g2_notch')
            a('s_and_b32 s49, s48, 60')
            a('s_lshr_b64 s[58:59], s[6:7], s49')
            a('s_and_b32 s58, s58, 15')
            a('s_lshl_b32 s58, s58, 2')
            a('s_and_b32 s49, s48, 3')
            a('s_add_u32 s58, s58, s49')
            a(f's_mul_i32 s58, s58, {32 * pitch}')
            a('s_add_u32 s58, s58, s47')
            a(f'buffer_load_dword v{5 + r}, v4, {sq(SW2)}, s58 offen')
        a.label('g2_notch')
    if NS:
        a('v_and_b32 v16, 31, v1')
        a('v_lshl_add_u32 v16, v16, 4, s4')
        a(f'v_add_u32 v17, s4, v{A_L16}')
    early = OPT.get('uearly', 0)
    if early:
        if OPT.get('uesl'):
            a(f's_sleep {OPT["uesl"]}')
        for t in range(3):
            zsel(t)
            act(t)
        a('s_waitcnt vmcnt(0)')
        for t in range(3):
            a(f'v_add_u32 v18, {t * G2_SLOT}, v16')
            a(f'v_add_u32 v19, {t * G2_SLOT}, v17')
            for i in range(5):
                r = 24 + 20 * t + 4 * i
                a(f'ds_read_b128 v[{r}:{r + 3}], v{19 if i else 18} offset:{512 + 1024 * (i - 1) if i else 0}')
        for i in range(15):
            r = 24 + 4 * i
            a(f's_waitcnt lgkmcnt({14 - i})')
            a(f'v_max3_u32 v{r}, v{r}, v{r + 1}, v{r + 2}')
            a(f'v_max3_u32 v{r}, v{r}, v{r + 3}, v{r - 4 if i else r}')
        a('v_cmp_eq_u32 s[46:47], -1, v80')
    US = OPT.get('uslow', 0)
    if US:
        assert not NS and not early
        a('s_and_b32 s47, s62, 3')
        a('s_cmp_ge_u32 s2, 216')
        a('s_cselect_b32 s47, 0, s47')
        a('s_cmp_eq_u32 s47, 1')
        a('s_cbranch_scc0 g2_ld_fast')
        if US > 1:
            a(f's_sleep {US}')
        a('s_branch g2_ld_slow')
        a.label('g2_ld_fast')
    if OPT.get('ubar', 1):
        a('s_cmp_lt_u32 s2, 216')
        a('s_cbranch_scc0 g2_ld_nobar2')
        a('s_barrier')
        if NS and OPT.get('spg', 3):
            if OPT.get('usl'):
                a(f's_sleep {OPT["usl"]}')
            a('s_branch g2_ld_go')
        a.label('g2_ld_nobar2')
        if NS and OPT.get('spg', 3):
            a(f's_mov_b64 exec, {(1 << 2 * OPT.get("spg", 3)) - 1:#x}')
            flag_poll(a, 'g2_spg', 2, 's50', 51, OPT.get('usl3', 4))
            a.label('g2_ld_go')
    if early:
        a('s_and_b64 exec, s[46:47], s[46:47]')
        a('s_cbranch_scc0 g2_early_ok')
    if OPT.get('usl') and not (NS and OPT.get('spg', 3) and OPT.get('ubar', 1)):
        a(f's_sleep {OPT["usl"]}')
    if OPT.get('hint2'):
        a(f's_mov_b64 exec, {(1 << 2 * OPT["hint2"]) - 1:#x}')
        flag_poll(a, 'g2_hint', 2, 's50', 51, OPT.get('usl3', 2), 4)
        if OPT.get('usl4'):
            a(f's_sleep {OPT["usl4"]}')
    if early:
        for t in range(3):
            act(t, ' sc1')
        a.label('g2_early_ok')
        a('s_mov_b64 exec, -1')
    if OPT.get('spw'):
        a('s_cmp_lt_u32 s2, 216')
        a('s_cbranch_scc1 g2_ld_spw')
        a(f's_mov_b64 exec, {(1 << 2 * OPT["spw"]) - 1:#x}')
        flag_poll(a, 'g2_spw', 2, 's50', 51, OPT.get('usl3', 4))
        a.label('g2_ld_spw')
    if US:
        a.label('g2_ld_slow')
    a('s_mov_b64 s[54:55], 0')
    a(f's_mov_b32 s56, {2 * NS}')
    k.mark('xst')
    for t in range(3):
        if not early:
            zsel(t, 2)
            act(t)
    if US:
        a('s_cmp_eq_u32 s47, 1')
        a('s_cbranch_scc0 g2_ld_fast2')
        a('s_barrier')
        a.label('g2_ld_fast2')
    fp = OPT.get('spfp2', NS - 4)
    if NS and fp < 0:
        first_poll()
    pend = []
    for t in range(G2_STAGES):
        last = max(i for i, u in enumerate(q) if u not in ('fl', 'fr') and u <= t)
        a(f's_waitcnt vmcnt({len(q) - 1 - last})' + (' lgkmcnt(0)' if held else ''))
        if pend and pend[0] < last:
            pend.pop(0)
            refresh_merge(a)
        if t < NS:
            so = (t % G2_NST) * G2_AST
            a(f'v_add_u32 v18, {so}, v16')
            a(f'v_add_u32 v19, {so}, v17')
            validate(a, [18, 19, 19, 19, 19], [0] + [512 + 1024 * j for j in range(4)], lambda: act(t, ' sc1'), 51, OPT.get('spsl2', 2))
            if t == 0:
                k.mark('g2go')
                k.markv('xn', 51)
        a('s_barrier')
        if NS and t == fp:
            first_poll()
        if OPT.get('rf2', 0) >> t & 1:
            refresh_issue(a)
            q.append('fr')
            pend.append(len(q) - 1)
        u, uw = t + 3, t + NW2 - 1
        if NPRE2 <= uw < G2_STAGES:
            zsel(uw, 1)
            if uw not in held:
                w(uw)
                q.extend([uw] * 4)
        if u < G2_STAGES:
            zsel(u, 2)
            act(u)
        ud = uw - OPT.get('wr2d', 0)
        if ud in held:
            unpark(ud)
    k.mark('g2end')


def g2_consumer(k):
    a = k.a
    g2_ids(a)
    WA, AAR, FA, FB, ACC = 8, 10, 24, 68, 128
    X1R, GBR, B2R = 200, 210, 230
    VROW = 22
    a('s_lshr_b32 s47, s44, 1')
    a('s_and_b32 s48, s44, 1')
    a('s_lshl_b32 s40, s3, 1')
    a('s_add_u32 s40, s40, s47')
    a('s_xor_b32 s41, s40, 1')
    w_addr_setup(a, WA, 2, 40, 4)
    a('s_lshl_b32 s42, s48, 12')
    a(f's_add_u32 s43, s42, {G2_A0}')
    a(f'v_add_u32 v{AAR}, s43, v{A_L16}')
    a('s_xor_b32 s43, s43, 4096')
    a(f'v_add_u32 v{AAR + 1}, s43, v{A_L16}')
    a(f'v_add_u32 v{AAR + 2}, {G2_A0 + 8192}, v{A_L16}')
    a('s_lshl_b32 s49, s45, 3')
    a('s_add_u32 s49, s49, s40')
    a('s_lshl_b32 s49, s49, 4')
    a('v_add_u32 v2, s49, v5')
    a(f'v_mov_b32 v{B2R}, 0')
    a('v_lshlrev_b32 v3, 1, v2')
    a(f'buffer_load_short_d16_hi v{B2R}, v3, {sq(SB2)}, 0 offen')
    a('v_mul_u32_u24 v2, 1152, v2')
    a(f'v_lshl_add_u32 v{VROW}, v6, 3, v2')
    a('s_mul_i32 s49, s46, 288')
    a('s_lshl_b32 s52, s48, 7')
    a('s_add_u32 s52, s52, s49')
    a('s_lshl_b32 s53, s48, 2')
    a('s_add_u32 s53, s53, s49')
    a('s_add_u32 s53, s53, 256')
    a(f's_add_u32 s54, s52, {WS_X1}')
    a(f's_add_u32 s55, s53, {WS_X1}')
    a('v_lshlrev_b32 v3, 4, v6')
    a('s_lshl_b32 s56, s52, 1')
    a(f's_add_u32 s56, s56, {WS_MOD + 5 * 2304}')
    a('s_lshl_b32 s57, s53, 1')
    a(f's_add_u32 s57, s57, {WS_MOD + 5 * 2304}')

    def act_off(ks, t):
        if t < 4:
            return 0, ks * 9216 + t * 1024
        if t < 8:
            return 1, ks * 9216 + (t - 4) * 1024
        return 2, ks * 9216

    MSG = (112, 232, 244)
    for o in MSG:
        for g in range(3):
            a(f'v_mov_b32 v{o + 4 * g + 3}, s26')
    a('s_lshl_b32 s50, s46, 4')
    a('s_add_u32 s50, s50, s45')
    a('s_lshl_b32 s50, s50, 2')
    a('s_add_u32 s50, s50, s3')
    a('s_lshl_b32 s50, s50, 4')
    WS_PART = 's49'
    if OPT.get('rotx'):
        a('s_bfe_u32 s49, s26, 0x30008')
        a('s_lshl_b32 s49, s49, 24')
        a('s_add_u32 s49, s49, 0x5000000')
    else:
        WS_PART = 0x1800000
    for x in (1, 2, 3):
        a(f's_xor_b32 s51, s44, {x}')
        a(f's_lshl_b32 s{60 + x}, s51, 2')
        a(f's_add_u32 s{60 + x}, s{60 + x}, s44')
        a(f's_add_u32 s{60 + x}, s{60 + x}, s50')
        a(f's_mul_i32 s{60 + x}, s{60 + x}, {PART_MSG}')
        a(f's_add_u32 s{60 + x}, s{60 + x}, {WS_PART}')
        a(f's_lshl_b32 s{4 + x}, s44, 2')
        a(f's_add_u32 s{4 + x}, s{4 + x}, s51')
        a(f's_add_u32 s{4 + x}, s{4 + x}, s50')
        a(f's_mul_i32 s{4 + x}, s{4 + x}, {PART_MSG}')
        a(f's_add_u32 s{4 + x}, s{4 + x}, {WS_PART}')
    if OPT.get('xsc') is not None:
        a('v_mov_b32 v23, s5')
        a('v_writelane_b32 v23, s6, 1')
        a('v_writelane_b32 v23, s7, 2')
    XH = OPT.get('xh', 0)
    if XH:
        for x in (0, 1, 2, 3):
            a(f's_xor_b32 s49, s44, {x}')
            a('s_mul_i32 s49, s49, 5')
            a('s_add_u32 s49, s49, s50')
            a(f's_mul_i32 s49, s49, {PART_MSG}')
            a(f's_add_u32 s49, s49, {WS_PART}')
            if x == 0:
                a(f'v_lshrrev_b32 v124, 2, v{A_L16}')
                a('v_add_u32 v124, s49, v124')
            elif x == 1:
                a('v_mov_b32 v125, s49')
            else:
                a(f'v_writelane_b32 v125, s49, {x - 1}')

    def notice():
        a(f'buffer_store_dword v{MSG[0] + 3}, v124, {sq(SWS)}, 0 offen sc1')

    def notice_loop():
        a(f's_cmp_eq_u32 s59, {XH - 2}')
        a('s_cbranch_scc0 g2_nonotice')
        notice()
        a.label('g2_nonotice')
    init = ['s_mov_b32 s24, 0']
    adv = [f's_add_u32 s24, s24, {G2_SLOT}', f's_cmp_eq_u32 s24, {G2_SLOT * G2_NST}', 's_cselect_b32 s24, 0, s24']
    SA2 = 24
    if NW2 != 4:
        SA2 = 4
        init = ['s_mov_b32 s24, 0', 's_mov_b32 s4, 0']
        adv = [f's_add_u32 s24, s24, {G2_WST}', f's_cmp_eq_u32 s24, {G2_WST * NW2}', 's_cselect_b32 s24, 0, s24',
               f's_add_u32 s4, s4, {G2_AST}', f's_cmp_eq_u32 s4, {G2_AST * G2_NST}', 's_cselect_b32 s4, 0, s4']
    NT = OPT.get('g2h', 0)
    if NT:
        tb = [g2_order(q) >> 20 & 0xffff for q in range(4)]
        a(f's_mov_b32 s42, {tb[0] | tb[1] << 16:#x}')
        a(f's_mov_b32 s43, {tb[2] | tb[3] << 16:#x}')
        a('s_lshl_b32 s58, s46, 2')
        a('s_add_u32 s58, s58, s3')
        a(f's_add_u32 s58, s58, {16 - 4 * NT}')
        a('s_lshl_b32 s51, s44, 4')
        a('s_and_b32 s49, s58, 12')
        a('s_add_u32 s51, s51, s49')
        a('s_lshr_b64 s[42:43], s[42:43], s51')
        a('s_and_b32 s42, s42, 15')
        a('s_lshl_b32 s42, s42, 2')
        a('s_and_b32 s49, s58, 3')
        a('s_add_u32 s42, s42, s49')
        a('s_lshl_b32 s42, s42, 17')
        a(f's_mul_i32 s43, s44, {1152 * 4096}')
        a('s_add_u32 s42, s42, s43')
        a('s_lshl_b32 s43, s45, 8')
        a('s_add_u32 s42, s42, s43')
        a('v_lshrrev_b32 v13, 1, v1')
        a('v_lshlrev_b32 v13, 12, v13')
        a('v_and_b32 v21, 1, v1')
        a('v_lshl_add_u32 v13, v21, 7, v13')
        a('v_add_u32 v13, s42, v13')
    a('s_cmp_lt_u32 s2, 216')
    a('s_cbranch_scc0 g2_late_ops')

    def late():
        for t in range(4):
            a(f'buffer_load_dwordx2 v[{X1R + 2 * t}:{X1R + 2 * t + 1}], v{VROW}, {sq(SWS)}, s54 offen offset:{32 * t}')
        a(f'buffer_load_dword v{X1R + 8}, v{VROW}, {sq(SWS)}, s55 offen')
        for t in range(4):
            a(f'buffer_load_dwordx4 v[{GBR + 4 * t}:{GBR + 4 * t + 3}], v3, {sq(SWS)}, s56 offen offset:{64 * t}')
        a(f'buffer_load_dwordx2 v[{GBR + 16}:{GBR + 17}], v3, {sq(SWS)}, s57 offen')
        pt = OPT.get('ptouch', 0)
        if pt:
            a('s_mov_b64 exec, 1')
            for x in (1, 2, 3):
                if pt & 1:
                    a(f'buffer_load_dword v23, v{A_L16}, {sq(SWS)}, s{60 + x} offen sc1')
                if pt & 2:
                    a(f'buffer_load_dword v23, v{A_L16}, {sq(SWS)}, s{4 + x} offen sc1')
            if pt & 4:
                a(f'buffer_load_dword v21, v{VROW}, {sq(SOUT)}, s52 offen sc1')
            if pt & 8:
                a('s_mul_i32 s51, s44, 5')
                a('s_add_u32 s51, s51, s50')
                a(f's_mul_i32 s51, s51, {PART_MSG}')
                a(f's_add_u32 s51, s51, {WS_PART}')
                a(f'buffer_load_dword v21, off, {sq(SWS)}, s51')
            a('s_mov_b64 exec, -1')
    late()
    a.label('g2_late_ops')

    def hook():
        a('s_cmp_lt_u32 s2, 216')
        a('s_cbranch_scc1 g2_late_done')
        late()
        a.label('g2_late_done')
        if NT:
            a('s_cmp_lt_u32 s58, 16')
            a('s_cbranch_scc0 g2_no_touch')
            a(f'buffer_load_dword v21, v13, {sq(SW2)}, 0 offen')
            a.label('g2_no_touch')
    def post():
        a(f's_cmp_eq_u32 s59, s25')
        a('s_cbranch_scc0 g2_nopost')
        a('v_mov_b32 v23, 1')
        a(f's_waitcnt vmcnt(11)')
        a('s_mov_b64 exec, 1')
        a(f'buffer_store_dword v23, off, {sq(SWS)}, s58 sc1')
        a('s_mov_b64 exec, -1')
        a.label('g2_nopost')
    if OPT.get('udef'):
        a('s_cmp_lt_u32 s2, 216')
        a(f's_cselect_b32 s25, {G2_STAGES - OPT["udef"]}, 0')
    consumer_loop(k, a, 'g2', G2_STAGES, init, adv, 2, 9, WA, [AAR, AAR + 1, AAR + 2], FA, FB, ACC, 4096,
                  act_off, True, 24, SA2, hook, post if OPT.get('udef') else notice_loop if XH > 2 else None,
                  {XH: notice} if XH in (1, 2) else {})
    acc = lambda m, t: ACC + 4 * (m * 9 + t)
    a('s_cmp_eq_u32 s48, 1')
    a('s_cbranch_scc0 g2_noswap')
    for m in range(2):
        for i in range(2):
            a(f'v_swap_b32 v{acc(m, 8) + i}, v{acc(m, 8) + 2 + i}')
    a.label('g2_noswap')
    gq = lambda o, d: o + 4 * (d // 3) + d % 3
    for x, (m, t0, zo) in ((1, (0, 4, 2)), (2, (1, 0, 0)), (3, (1, 4, 2))):
        o = MSG[x - 1]
        src = [acc(m, t0 + t) + 2 * h for t in range(4) for h in range(2)] + [acc(m, 8) + zo]
        for g in range(3):
            for d in range(3 * g, 3 * g + 3):
                a(f'v_cvt_pk_bf16_f32 v{gq(o, d)}, v{src[d]}, v{src[d] + 1}')
            a(f'buffer_store_dwordx4 v[{o + 4 * g}:{o + 4 * g + 3}], v{A_L16}, {sq(SWS)}, s{60 + x} offen offset:{1024 * g} sc1')
    a('s_mov_b32 s42, 0xffff0000')
    own = [acc(0, t) + i for t in range(4) for i in range(4)] + [acc(0, 8), acc(0, 8) + 1]
    T = FA
    a('s_waitcnt vmcnt(9)')
    for r in own:
        a(f'v_add_f32 v{r}, v{r}, v{B2R}')
    for d in range(9):
        a(f'v_lshlrev_b32 v{T + 8 + 2 * d}, 16, v{X1R + d}')
        a(f'v_and_b32 v{T + 9 + 2 * d}, s42, v{X1R + d}')
    k.mark('xst')
    if OPT.get('xdr', 1):
        a('s_waitcnt vmcnt(0)')
    k.mark('xdr')
    if OPT.get('xsl'):
        a(f's_sleep {OPT["xsl"]}')
    a('s_mov_b32 s49, 0')

    def msg(x):
        o = FB + 12 * (x - 1)
        for g in range(3):
            a(f'buffer_load_dwordx4 v[{o + 4 * g}:{o + 4 * g + 3}], v{A_L16}, {sq(SWS)}, s{4 + x} offen offset:{1024 * g} sc1')
    if OPT.get('xsc') is not None:
        a('s_mov_b64 s[40:41], 7')
        a.label('g2_scout')
        a('s_mov_b64 exec, s[40:41]')
        if XH:
            a(f'buffer_load_dword v2, v125, {sq(SWS)}, 0 offen sc1')
        else:
            a(f'buffer_load_dword v2, v23, {sq(SWS)}, 0 offen offset:{OPT["xsc"] + 12} sc1')
        a('s_add_u32 s49, s49, 1')
        a('s_waitcnt vmcnt(0)')
        a('v_cmp_eq_u32 vcc, s26, v2')
        a('s_mov_b64 exec, -1')
        if OPT.get('xsl3'):
            a('s_cbranch_vccz g2_scn')
            a(f's_sleep {OPT["xsl3"]}')
            a.label('g2_scn')
        for x in (1, 2, 3):
            a(f's_bitcmp1_b32 vcc_lo, {x - 1}')
            a(f's_cbranch_scc0 g2_sc{x}')
            msg(x)
            a.label(f'g2_sc{x}')
        a('s_andn2_b32 s40, s40, vcc_lo')
        a('s_cbranch_scc0 g2_check')
        if OPT.get('xsl2'):
            a(f's_sleep {OPT["xsl2"]}')
        a(f's_cmp_lt_u32 s49, {POLL_MAX}')
        a('s_cbranch_scc1 g2_scout')
    a.label('g2_poll')
    for x in (1, 2, 3):
        msg(x)
    a('s_add_u32 s49, s49, 1')
    a.label('g2_check')
    a('s_waitcnt vmcnt(0)')
    tg = [FB + 4 * i + 3 for i in range(9)]
    for i in range(9):
        a(f'v_xor_b32 v{T + i % 8 if i < 8 else 2}, s26, v{tg[i]}')
    a(f'v_or3_b32 v{T}, v{T}, v{T + 1}, v{T + 2}')
    a(f'v_or3_b32 v{T + 3}, v{T + 3}, v{T + 4}, v{T + 5}')
    a(f'v_or3_b32 v{T + 6}, v{T + 6}, v{T + 7}, v2')
    a(f'v_or3_b32 v{T}, v{T}, v{T + 3}, v{T + 6}')
    a(f'v_cmp_ne_u32 vcc, 0, v{T}')
    a('s_and_b64 exec, vcc, vcc')
    a('s_cbranch_scc0 g2_ready')
    if OPT.get('xsl2'):
        a(f's_sleep {OPT["xsl2"]}')
    a(f's_cmp_lt_u32 s49, {POLL_MAX}')
    a('s_cbranch_scc1 g2_poll')
    a.label('g2_ready')
    a('s_mov_b64 exec, -1')
    k.mark('g2rdy')
    k.markv('xn', 49)
    for x in (1, 2, 3):
        o = FB + 12 * (x - 1)
        for d in range(9):
            tt = T + 2 * (d % 2)
            a(f'v_lshlrev_b32 v{tt}, 16, v{gq(o, d)}')
            a(f'v_and_b32 v{tt + 1}, s42, v{gq(o, d)}')
            a(f'v_pk_add_f32 v[{own[2 * d]}:{own[2 * d] + 1}], v[{own[2 * d]}:{own[2 * d] + 1}], v[{tt}:{tt + 1}]')
    for d in range(9):
        a(f'v_pk_fma_f32 v[{own[2 * d]}:{own[2 * d] + 1}], v[{own[2 * d]}:{own[2 * d] + 1}], v[{GBR + 2 * d}:{GBR + 2 * d + 1}], v[{T + 8 + 2 * d}:{T + 9 + 2 * d}]')
        a(f'v_cvt_pk_bf16_f32 v{FB + d}, v{own[2 * d]}, v{own[2 * d + 1]}')
        if d % 2:
            a(f'buffer_store_dwordx2 v[{FB + d - 1}:{FB + d}], v{VROW}, {sq(SOUT)}, s52 offen offset:{16 * (d - 1)}' + pol('p_out'))
    a(f'buffer_store_dword v{FB + 8}, v{VROW}, {sq(SOUT)}, s53 offen' + pol('p_out'))


def tail(k):
    a = k.a
    a('v_mov_b32 v3, 1')
    a('s_lshl_b32 s50, s38, 10')
    a(f's_add_u32 s50, s50, {WS_FLG + FL_H2}')
    a('s_barrier')
    a('s_cmp_eq_u32 s3, 0')
    a('s_cbranch_scc0 t_noflag')
    a('s_mov_b64 exec, 1')
    a(f'buffer_store_dword v3, off, {sq(SWS)}, s50 sc1')
    a('s_mov_b64 exec, -1')
    a.label('t_noflag')
    k.mark('fend')
    a('s_cmp_ge_u32 s2, 216')
    a('s_cbranch_scc1 t_spare')
    a('s_cmp_lt_u32 s3, 4')
    a('s_cbranch_scc1 t_cons')
    g1_loader(k)
    a.label('t_ld2')
    g2_loader(k)
    a('s_branch t_end')
    a.label('t_spare')
    if OPT.get('pfg1'):
        a('s_sub_u32 s50, s37, 27')
        a('s_lshl_b32 s50, s50, 3')
        a('s_add_u32 s50, s50, s3')
        for _ in range(OPT.get('t4sl', 0)):
            a('s_sleep 16')
        if OPT.get('t4l'):
            first, last = OPT.get('t4f', 0), min(OPT['t4l'], 341)
            n, step = last - first, 6 * F * 2
            a(f's_add_u32 s58, s50, {first}')
            a(f's_mul_i32 s58, s58, {step}')
            a('s_add_u32 s58, s58, s57')
            for r in range((n + 39) // 40):
                lab = a.newlabel('t4')
                a(f's_cmp_lt_u32 s50, {n - r * 40}')
                a(f's_cbranch_scc0 {lab}')
                if r >= OPT.get('t4d', 2):
                    a(f's_waitcnt vmcnt({(OPT.get("t4d", 2) - 1) * len(tpair("tp4"))})')
                for sfx in tpair('tp4'):
                    a(f'buffer_load_dword v8, v17, {sq(SW1)}, s58 offen' + sfx)
                a.label(lab)
                a(f's_add_u32 s58, s58, {40 * step}')
        if OPT.get('pfh'):
            assert not H2S
            a(f's_cmp_lt_u32 s50, {G1_STAGES - OPT["pfh"]}')
            a('s_cbranch_scc0 t_nopfh')
            for _ in range(OPT.get('pfhsl', 2)):
                a('s_sleep 16')
            a(f's_add_u32 s52, s50, {OPT["pfh"]}')
            a('v_lshlrev_b32 v2, 10, v1')
            a('s_lshl_b32 s53, s52, 13')
            a(f's_add_u32 s53, s53, {WS_FLG + FL_H2}')
            a('s_mov_b64 exec, 0xff')
            flag_poll(a, 't_pfh', 2, 's53', 51, OPT.get('pfhrs', 8))
            a(f's_mul_i32 s52, s52, {G1_ACT}')
            a(f's_add_u32 s52, s52, {WS_H2}')
            a('v_lshlrev_b32 v2, 7, v1')
            a('v_and_b32 v4, 31, v1')
            a('v_lshlrev_b32 v4, 7, v4')
            a('v_add_u32 v4, 8192, v4')
            for d in range(6):
                a(f'buffer_load_dword v8, v2, {sq(SWS)}, s52 offen')
                a(f'buffer_load_dword v8, v4, {sq(SWS)}, s52 offen')
                a(f's_add_u32 s52, s52, {256 * H2_BLK}')
                if d % OPT.get('pfhd', 99) == OPT.get('pfhd', 99) - 1:
                    a('s_waitcnt vmcnt(0)')
            a('s_waitcnt vmcnt(0)')
            for _ in range(OPT.get('pfhs2', 0)):
                a('s_sleep 16')
            a('s_branch t_pfh_done')
            a.label('t_nopfh')
        for _ in range(OPT.get('pf2sl', 0)):
            a('s_sleep 16')
        if OPT.get('pfh'):
            a.label('t_pfh_done')
        a('s_waitcnt vmcnt(0)')
        if OPT.get('cpf2') == 1:
            a('s_mov_b32 s48, s50')
            code_touch(a, 'cpf2', 27, 1, 20, 't_ld2')
            a('s_mov_b32 s50, s48')
        if OPT.get('pf2rev'):
            a('s_sub_u32 s50, 39, s50')
        if OPT.get('pf2', 1) == 2:
            pf_w2b(a, 50, 40, OPT.get('pf2f', 48), OPT.get('pf2l', 288), OPT.get('pfg1depth', 1))
        if OPT.get('cpf2') == 2:
            code_touch(a, 'cpf2', 27, 1, 20, 't_ld2')
            a('s_waitcnt vmcnt(0)')
        if OPT.get('pf2', 1) == 1:
            pf_w2(a, 36, 50, 40, last=OPT.get('pf2l', 288), depth=OPT.get('pfg1depth', 1))
    a('s_cmp_lt_u32 s3, 4')
    a('s_cbranch_scc1 t_cons2')
    if OPT.get('sp2'):
        a('v_lshlrev_b32 v2, 10, v1')
        a(f's_mov_b32 s50, {WS_FLG + FL_H2}')
        a('s_mov_b32 s51, 0')
        a.label('t_allh2')
        for j in range(4):
            a(f'buffer_load_dword v{4 + j}, v2, {sq(SWS)}, s50 offen sc1')
            a(f's_add_u32 s50, s50, {65536 if j < 3 else -3 * 65536 & 0xffffffff:#x}')
        a('s_add_u32 s51, s51, 1')
        a('s_waitcnt vmcnt(0)')
        a('v_min_u32 v4, v4, v5')
        a('v_min3_u32 v4, v4, v6, v7')
        a('v_cmp_eq_u32 vcc, 0, v4')
        a('s_nop 1')
        a('s_cbranch_vccz t_ld2')
        a('s_sleep 4')
        a(f's_cmp_lt_u32 s51, {POLL_MAX}')
        a('s_cbranch_scc1 t_allh2')
    a('s_branch t_ld2')
    a.label('t_cons')
    g1_consumer(k)
    a.label('t_cons2')
    g2_consumer(k)
    a.label('t_end')


def pf_w2(a, sx, sj, nw, first=0, last=288, depth=None):
    a(f's_and_b32 s51, s{sx}, 1')
    a('s_lshl_b32 s51, s51, 11')
    a(f's_lshr_b32 s52, s{sx}, 1')
    a(f's_mul_i32 s52, s52, {1152 * 4096}')
    a('s_add_u32 s51, s51, s52')
    a(f's_add_u32 s52, {first}, s{sj}')
    a('s_lshl_b32 s52, s52, 14')
    a('s_add_u32 s52, s52, s51')
    a('v_lshrrev_b32 v2, 4, v1')
    a('v_lshlrev_b32 v2, 12, v2')
    a('v_and_b32 v3, 15, v1')
    a('v_lshl_add_u32 v2, v3, 7, v2')
    n = last - first
    reps = (n + nw - 1) // nw
    for r in range(reps):
        if (r + 1) * nw > n:
            lab = a.newlabel('pfskip')
            a(f's_cmp_lt_u32 s{sj}, {n - r * nw}')
            a(f's_cbranch_scc0 {lab}')
        if depth is not None and r >= depth:
            a(f's_waitcnt vmcnt({(depth - 1) * len(tpair("tpw"))})')
        for sfx in tpair('tpw'):
            a(f'buffer_load_dword v4, v2, {sq(SW2)}, s52 offen' + sfx)
        if (r + 1) * nw > n:
            a.label(lab)
        else:
            a(f's_add_u32 s52, s52, {nw << 14}')
    a('s_waitcnt vmcnt(0)')
```
